```python
import torch

def _softmax(x, axis=-1):
    return torch.softmax(x, dim=axis)
def _gelu(x):
    return torch.nn.functional.gelu(x, approximate="tanh")
def _silu(x):
    return torch.nn.functional.silu(x)
def _sigmoid(x):
    return torch.sigmoid(x)
def _layernorm(x, axis=-1, eps=1e-5):
    m = x.mean(dim=axis, keepdim=True)
    v = x.var(dim=axis, keepdim=True, unbiased=False)
    return (x - m) / torch.sqrt(v + eps)
def _scatter_add(tgt, idx, src, axis=0):
    return tgt.clone().index_add_(axis, idx, src)
def _segment_sum(src, seg, n):
    out = torch.zeros((n,) + src.shape[1:], dtype=src.dtype)
    return out.index_add_(0, seg, src)
def _pad(x, pw):
    flat = tuple(v for pair in reversed(pw) for v in pair)
    return torch.nn.functional.pad(x, flat)

kernel_name = 'standalone__self_sup_conv_stem_hubert__speech'

def setup_inputs():

    _w = (lambda a: (lambda t: t.to(torch.bfloat16) if t.is_floating_point() else t)(torch.as_tensor(a)))
    B, T, D, K = 2, 4000, 512, 31
    scale = (1.0 / (K * D)) ** 0.5
    return {
        "x": _w((lambda *s: torch.randn(*s, dtype=torch.bfloat16) * 0.05)(B, T, D)),
        "w": _w((lambda *s: torch.randn(*s, dtype=torch.bfloat16) * 0.05)(K, D, D) * scale),
        "b": _w((lambda *s: torch.randn(*s, dtype=torch.bfloat16) * 0.05)(D) * 0.1),
        "gamma": _w(torch.ones((D,), dtype=float)),
        "beta": _w(torch.zeros((D,), dtype=float)),
    }

def reference(x, w, b, gamma, beta):
    B, T, D = x.shape
    K = w.shape[0]
    s = 2
    L = (T - K) // s + 1
    y = torch.einsum('blc,cd->bld', x[:, 0 : s * L : s, :], w[0])
    for i in range(1, K):
        y = y + torch.einsum('blc,cd->bld', x[:, i : i + s * L : s, :], w[i])
    y = y + b[None, None, :]
    mu = y.mean(1, keepdims=True)
    var = ((y - mu) ** 2).mean(1, keepdims=True)
    yn = (y - mu) / torch.sqrt(var + 1e-5)
    yn = yn * gamma[None, None, :] + beta[None, None, :]
    return _gelu(yn)
```

```python
import sys, os
from build import build
KN = "standalone__self_sup_conv_stem_hubert__speech_kernel"
HDR = open("standalone__self_sup_conv_stem_hubert__speech.s.ref").read().split("; Override launch")[0]

XS = 36864
WBASE = 2*XS
LDS = WBASE + 4*16384

class Stream:
    def __init__(self): self.items = []
    def i(self, s): self.items.append(dict(k='i', s=s))
    def ds(self, tag, s): self.items.append(dict(k='ds', tag=tag, s=s))
    def vm(self, tag, s): self.items.append(dict(k='vm', tag=tag, s=s))
    def need(self, ds=(), vm=()): self.items.append(dict(k='need', ds=list(ds), vm=list(vm), nds=None, nvm=None))

def resolve(paths):
    for path in paths:
        dsh = []; vmh = []
        dsdone = 0; vmdone = 0
        for it in path:
            if it['k'] == 'ds': dsh.append(it['tag'])
            elif it['k'] == 'vm': vmh.append(it['tag'])
            elif it['k'] == 'need':
                for key, hist, nk in (('ds', dsh, 'nds'), ('vm', vmh, 'nvm')):
                    for tag in it[key]:
                        idx = max(j for j, t in enumerate(hist) if t == tag)
                        n = len(hist) - 1 - idx
                        it[nk] = n if it[nk] is None else min(it[nk], n)

def emit(items, out):
    for it in items:
        if it['k'] == 'need':
            p = []
            if it['nvm'] is not None: p.append(f"vmcnt({min(it['nvm'],63)})")
            if it['nds'] is not None: p.append(f"lgkmcnt({min(it['nds'],15)})")
            if p: out.append("s_waitcnt " + " ".join(p))
        else: out.append(it['s'])

def prune_waits(paths):
    seen = {}
    for path in paths:
        nds = 0; nvm = 0; dsdone = 0; vmdone = 0
        for it in path:
            if it['k'] == 'ds': nds += 1
            elif it['k'] == 'vm': nvm += 1
            elif it['k'] == 'need':
                for nk, tot, which in (('nds', nds, 0), ('nvm', nvm, 1)):
                    if it[nk] is None: continue
                    lim = 15 if which == 0 else 63
                    c = min(it[nk], lim)
                    tgt = tot - c
                    done = dsdone if which == 0 else vmdone
                    red = tgt <= done
                    key = (id(it), nk)
                    seen[key] = seen.get(key, True) and red
                    if which == 0: dsdone = max(dsdone, tgt)
                    else: vmdone = max(vmdone, tgt)
    for path in paths:
        for it in path:
            if it['k'] == 'need':
                for nk in ('nds', 'nvm'):
                    if seen.get((id(it), nk)): it[nk] = None

def gen(name, stamps=0, dmapos=(4,6,8,10), trpos=(11,13,15,17,19,21,23,25), xwin=10, prio=3, wfirst=1, mapmode=0, spin=1<<20, pref=1, prefd=1, nodma=0, notr=0, noa=0, allv=0, stampset=0, hlat=0):
    L = []; A = L.append
    A(HDR.rstrip("\n"))
    A("; Override launch geometry by editing the next line (default: block=256,")
    A("; grid=ceil(out_elems/256), lds=0). Harness parses it; keep it on one line.")
    A(f"; @launch grid=(256,1,1) block=(320,1,1) lds={LDS}")
    A('.amdgcn_target "amdgcn-amd-amdhsa--gfx950"')
    A(".text"); A(f".globl {KN}"); A(".p2align 8"); A(f".type {KN},@function"); A(f"{KN}:")
    vAA = 1; vBA = 4; vWO = 8; vPAR = 12; vT = 18; vX = 24; vW = 56; vOWN = 128
    sX = 4; sW = 8; sS = 12; sO = 16; sD = 20
    sWV = 24; sNS = 25; sTILE = 26; sB = 27; sGRP = 28; sLAST = 29; sM0 = 30; sWC = 34; sWO = 35; sCNT = 36; sT = 37
    sMK0 = 40; sMKA = 42; sINV = 44; sIDX = 45
    sP = 48
    sST = 64
    def acc(f, nb):
        if nb == 0: return f"v[{vOWN+4*f}:{vOWN+4*f+3}]"
        b = (f*3 + nb-1)*4
        return f"a[{b}:{b+3}]"
    nst = [0]
    def stamp(k, S=None):
        if not stamps: return
        if stampset == 1:
            if k in (7, 8): return
            if k >= 20: k -= 13
        elif k >= 20: return
        s = f"s_memtime s[{sST+2*k}:{sST+2*k+1}]"
        (S.i if S else A)(s)
    A("s_cmp_ge_u32 s2, 256"); A("s_cbranch_scc1 L_done")
    A(f"s_load_dwordx16 s[{sP}:{sP+15}], s[0:1], 0")
    if stamps: A(f"s_memtime s[{sST}:{sST+1}]"); A(f"s_memrealtime s[{sST+28}:{sST+29}]")
    A("v_lshrrev_b32 v1, 6, v0"); A("v_and_b32 v0, 63, v0")
    if mapmode == 0:
        A(f"s_and_b32 s{sNS}, s2, 7"); A(f"s_lshr_b32 s{sIDX}, s2, 3")
        A(f"s_and_b32 s{sTILE}, s{sIDX}, 15"); A(f"s_lshr_b32 s{sB}, s{sIDX}, 4")
    A(f"v_readfirstlane_b32 s{sWV}, v1")
    A(f"s_lshl_b32 s{sGRP}, s{sB}, 3"); A(f"s_add_u32 s{sGRP}, s{sGRP}, s{sNS}")
    A(f"s_cmp_eq_u32 s{sTILE}, 15"); A(f"s_cselect_b32 s{sLAST}, 1, 0")
    A(f"s_mov_b32 s{sW+2}, 16252928"); A(f"s_mov_b32 s{sW+3}, 0x20000")
    A(f"s_mov_b32 s{sS+2}, 8192"); A(f"s_mov_b32 s{sS+3}, 0x20000")
    A(f"s_cmp_eq_u32 s{sWV}, 4"); A("s_cbranch_scc1 L_helper")
    if prio: A(f"s_setprio {prio}")
    A("v_lshrrev_b32 v18, 3, v0")
    A("v_and_b32 v19, 7, v0")
    A("v_and_b32 v20, 2, v18"); A("v_xor_b32 v19, v19, v20")
    A(f"s_lshl_b32 s{sT}, s{sWV}, 15"); A(f"s_lshl_b32 s{sT+1}, s{sNS}, 7"); A(f"s_add_u32 s{sT}, s{sT}, s{sT+1}")
    A("v_lshlrev_b32 v18, 10, v18"); A(f"v_add_u32 v18, s{sT}, v18")
    A("v_lshlrev_b32 v20, 4, v19"); A("v_xor_b32 v21, 64, v20")
    A(f"v_add_u32 v{vWO}, v18, v20"); A(f"v_add_u32 v{vWO+1}, v18, v21")
    A(f"v_add_u32 v{vWO+1}, 7168, v{vWO+1}")
    A(f"v_add_u32 v{vWO+2}, {2*7168}, v{vWO}"); A(f"v_add_u32 v{vWO+3}, {2*7168}, v{vWO+1}")
    A(f"s_lshl_b32 s{sT}, s{sWV}, 14"); A(f"s_add_u32 s{sM0}, s{sT}, {WBASE}")
    for k in range(1, 4): A(f"s_add_u32 s{sM0+k}, s{sM0}, {4096*k}")
    A("v_lshrrev_b32 v22, 4, v0")
    A(f"s_lshl_b32 s{sT}, s{sWV}, 5"); A(f"s_add_u32 s{sT}, s{sT}, s{sT+1}")
    A("v_lshlrev_b32 v23, 3, v22"); A(f"v_add_u32 v23, s{sT}, v23")
    A(f"s_mov_b32 s{sWC}, 0")
    A("s_waitcnt lgkmcnt(0)")
    A(f"s_mov_b32 s{sW}, s{sP+2}"); A(f"s_mov_b32 s{sW+1}, s{sP+3}")
    stamp(20)
    P = Stream()
    TAPS = [(0, j) for j in range(16)] + [(1, j) for j in range(15)]
    def tapoff(t):
        c = 0
        if t >= 31: t -= 31; c = 131072
        p, j = TAPS[t]
        return (2*j+p)*524288 + c
    def wdma(S, t, slot, pos=None):
        o = []
        o.append(lambda: (S.i(f"s_mov_b32 m0, s{sM0+slot}"), S.i(f"s_add_u32 s{sWO}, s{sWC}, {tapoff(t)}")))
        for d in range(4):
            o.append(lambda d=d: S.vm(('W', t % 31), f"buffer_load_dwordx4 v{vWO+d}, s[{sW}:{sW+3}], s{sWO} offen offset:{d*1024} lds"))
        return o
    for t in range(4):
        for fn in wdma(P, t, t): fn()
        if t == 0:
            for k in range(3):
                P.vm(('par', k), f"global_load_dwordx2 v[{vPAR+2*k}:{vPAR+2*k+1}], v23, s[{sP+4+2*k}:{sP+5+2*k}]")
    P.i("v_and_b32 v18, 15, v0")
    P.i(f"s_lshl_b32 s{sT}, s{sWV}, 2"); P.i(f"v_add_u32 v19, s{sT}, v22")
    for q0 in range(3):
        P.i(f"v_add_u32 v20, {q0}, v18"); P.i("v_and_b32 v21, 7, v20"); P.i("v_lshlrev_b32 v21, 1, v21"); P.i("v_xor_b32 v21, v21, v19")
        P.i("v_lshlrev_b32 v21, 4, v21"); P.i("v_lshlrev_b32 v20, 11, v20"); P.i(f"v_add_u32 v{vAA+q0}, v20, v21")
    P.i("v_bfe_u32 v18, v0, 2, 2")
    P.i("v_lshlrev_b32 v19, 3, v22"); P.i("v_add_u32 v19, v19, v18"); P.i("v_lshlrev_b32 v19, 7, v19")
    P.i("v_and_b32 v20, 3, v0"); P.i("v_lshlrev_b32 v20, 3, v20"); P.i("v_add_u32 v19, v19, v20")
    P.i(f"v_add_u32 v19, s{sM0}, v19")
    P.i("v_lshrrev_b32 v18, 1, v18"); P.i("v_and_b32 v20, 1, v22"); P.i("v_lshlrev_b32 v20, 1, v20"); P.i("v_or_b32 v18, v18, v20")
    P.i(f"v_xor_b32 v18, s{sWV}, v18")
    for nb in range(4):
        P.i(f"v_xor_b32 v20, {nb}, v18"); P.i("v_lshlrev_b32 v20, 5, v20"); P.i(f"v_add_u32 v{vBA+nb}, v19, v20")
    for k in range(32): P.i(f"v_mov_b32 v{vOWN+k}, 0")
    for k in range(96): P.i(f"v_accvgpr_write_b32 a{k}, 0")
    P.i(f"s_lshl_b32 s{sT}, s{sGRP}, 13"); P.i(f"s_add_u32 s{sS}, s{sP+14}, s{sT}"); P.i(f"s_addc_u32 s{sS+1}, s{sP+15}, 0")
    P.i(f"s_mul_i32 s{sT}, s{sB}, {1985*1024}"); P.i(f"s_add_u32 s{sO}, s{sP+10}, s{sT}"); P.i(f"s_addc_u32 s{sO+1}, s{sP+11}, 0")
    P.i(f"s_mov_b32 s{sO+2}, {1985*1024}"); P.i(f"s_mov_b32 s{sO+3}, 0x20000")
    P.i(f"s_mov_b32 s{sCNT}, 3")
    def bread(S, t, nb, h, bs):
        slot = (t % 31) % 4
        d = vW + 16*bs + 4*nb + 2*h
        S.ds(('B', nb), f"ds_read_b64_tr_b16 v[{d}:{d+1}], v{vBA+nb} offset:{slot*4096 + h*512}")
    def aread(S, p, g):
        st = g % 8
        S.ds(('A', st), f"ds_read_b128 v[{vX+4*st}:{vX+4*st+3}], v{vAA + (g>>3)} offset:{p*XS + (g&7)*256}")
    P.need(vm=[('W', 0)])
    stamp(21, P)
    for nb in range(4):
        for h in range(2): bread(P, 0, nb, h, 0)
    P.i("s_barrier")
    for e in range(8): aread(P, 0, e)
    stamp(1, P)
    if stamps: P.i(f"s_memrealtime s[{sST+24}:{sST+25}]")
    def bbuf(t):
        t = t % 31
        return 2 if t == 30 else (t & 1)
    def tap(S, t, final=False):
        p, j = TAPS[t]
        nt = 16 if p == 0 else 15
        lastofunit = (j == nt-1)
        ins = {m: [] for m in range(-1, 32)}
        tn = None
        if t <= 26: tn, slot = t+4, t % 4
        elif not final: tn, slot = {27: (34, 3), 28: (31, 0), 29: (32, 1), 30: (33, 2)}[t]
        if tn is not None and not nodma:
            o = wdma(S, tn, slot)
            ins[dmapos[0]-1].append(o[0])
            for d in range(4): ins[dmapos[d]].append(o[1+d])
        if not (final and t == 30):
            nxt = t+1
            if not nodma: ins[trpos[0]].append(lambda: S.need(vm=[('W', nxt % 31)]))
            k = 0
            for nb in range(0 if notr else 4):
                for h in range(2):
                    ins[trpos[k]].append(lambda nb=nb, h=h: bread(S, nxt, nb, h, bbuf(nxt))); k += 1
        if noa:
            if lastofunit and not (final and t == 30): ins[3].append(lambda: S.i("s_barrier"))
        elif not lastofunit:
            ins[3].append(lambda: aread(S, p, j+8))
        elif not (final and t == 30):
            ins[3].append(lambda: S.i("s_barrier"))
            sh = 1 if p == 0 else 2
            for e in range(8):
                gi = (e+sh) % 8
                ins[4*gi+3].append(lambda e=e: aread(S, 1-p, e))
        if final and t == 30:
            for f in range(6):
                for nb in range(1, 4):
                    ins[4*(f+2)+nb].append(lambda f=f, nb=nb: redw(S, f, nb))
        b = 0 if notr else bbuf(t)
        for m in range(32):
            f = m >> 2; nb = m & 3
            if f & 1: nb = 3-nb
            nd = []
            if (m & 3) == 0: nd.append(('A', (j+f) % 8))
            if f == 0: nd.append(('B', nb))
            if nd: S.need(ds=nd)
            xa = vX + 4*((j+f) % 8); wb = vW + 16*b + 4*nb
            if wfirst: S.i(f"v_mfma_f32_16x16x32_bf16 {acc(f,nb)}, v[{wb}:{wb+3}], v[{xa}:{xa+3}], {acc(f,nb)}")
            else: S.i(f"v_mfma_f32_16x16x32_bf16 {acc(f,nb)}, v[{xa}:{xa+3}], v[{wb}:{wb+3}], {acc(f,nb)}")
            for fn in ins[m]: fn()
    vRW = 18
    def redw(S, f, nb):
        if nb < 3: S.ds(('R',), f"ds_write_b128 v{vRW}, {acc(f,nb)} offset:{(nb-1)*8192 + f*1024}")
        else: S.ds(('R',), f"ds_write_b128 v{vRW+1}, {acc(f,nb)} offset:{f*1024}")
    B1 = Stream(); B2 = Stream(); F = Stream()
    for t in range(27): tap(B1, t)
    B1.i(f"s_cmp_eq_u32 s{sCNT}, 0"); B1.i("s_cbranch_scc1 L_final")
    for t in range(27, 31): tap(B2, t)
    B2.i(f"s_add_u32 s{sWC}, s{sWC}, 131072"); B2.i(f"s_sub_u32 s{sCNT}, s{sCNT}, 1")
    if stamps:
        B2.i(f"s_mov_b64 s[{sST+4}:{sST+5}], s[{sST+6}:{sST+7}]"); B2.i(f"s_mov_b64 s[{sST+6}:{sST+7}], s[{sST+8}:{sST+9}]")
        stamp(4, B2)
    B2.i("s_branch L_loop")
    F.i(f"v_lshlrev_b32 v20, 4, v0"); F.i(f"v_add_u32 v{vRW}, s{sM0}, v20")
    F.i(f"s_lshl_b32 s{sT}, s{sWV}, 13"); F.i(f"v_add_u32 v{vRW+1}, s{sT}, v20")
    for nb in range(1, 4):
        F.i(f"s_xor_b32 s{sT}, s{sWV}, {nb}")
        if nb < 3: F.i(f"s_lshl_b32 s{sT}, s{sT}, 14"); F.i(f"s_add_u32 s{sT}, s{sT}, {WBASE + (nb-1)*8192}")
        else: F.i(f"s_lshl_b32 s{sT}, s{sT}, 13")
        F.i(f"v_add_u32 v{20+nb}, s{sT}, v20")
    for t in range(27, 31): tap(F, t, final=True)
    stamp(5, F)
    if stamps: F.i(f"s_memrealtime s[{sST+26}:{sST+27}]")
    F.i("s_nop 3")
    for nb in range(1, 4): redw(F, 6, nb)
    F.i("s_nop 3")
    for nb in range(1, 4): redw(F, 7, nb)
    paths = [P.items + B1.items + B2.items + B1.items + B2.items + B1.items + F.items]
    resolve(paths); prune_waits(paths)
    emit(P.items, L)
    A(".p2align 6"); A("L_loop:")
    emit(B1.items, L); emit(B2.items, L)
    A(".p2align 6"); A("L_final:")
    emit(F.items, L)
    A("v_and_b32 v1, 15, v0")
    A(f"s_cmp_lg_u32 s{sLAST}, 0")
    A(f"s_cselect_b32 s{sT}, 9, 16"); A(f"s_cselect_b32 s{sT+1}, 8, 16")
    A(f"s_mov_b32 s{sINV}, 0x3c000000"); A(f"s_cmov_b32 s{sINV}, 0x3c7c0fc1")
    A(f"v_cmp_gt_u32 s[{sMK0}:{sMK0+1}], s{sT}, v1"); A(f"v_cmp_gt_u32 s[{sMKA}:{sMKA+1}], s{sT+1}, v1")
    A("v_lshrrev_b32 v2, 4, v0"); A("v_lshlrev_b32 v2, 5, v2"); A(f"s_lshl_b32 s{sT}, s{sWV}, 7"); A(f"v_add_u32 v2, s{sT}, v2")
    A("v_lshlrev_b32 v3, 9, v1"); A("v_add_u32 v3, v3, v2")
    A(f"s_lshl_b32 s{sT}, s{sTILE}, 9"); A("v_lshlrev_b32 v4, 4, v1"); A(f"v_add_u32 v2, s{sT}, v2"); A("v_add_u32 v2, v2, v4")
    A(f"s_lshl_b32 s{sT}, s{sTILE}, 17"); A(f"s_lshl_b32 s{sT+1}, s{sNS}, 7"); A(f"s_add_u32 s{sT}, s{sT}, s{sT+1}")
    A(f"s_lshl_b32 s{sT+1}, s{sWV}, 5"); A(f"s_add_u32 s{sT}, s{sT}, s{sT+1}")
    A("v_lshlrev_b32 v4, 13, v1"); A("v_lshrrev_b32 v5, 4, v0"); A("v_lshlrev_b32 v5, 3, v5"); A("v_add_u32 v4, v4, v5"); A(f"v_add_u32 v4, s{sT}, v4")
    A("v_add_u32 v5, 4096, v4")
    A("s_waitcnt lgkmcnt(0)"); A("s_barrier")
    vR = 24
    for f in range(8):
        for nb in range(1, 4):
            d = vR + (f*3 + nb-1)*4
            A(f"ds_read_b128 v[{d}:{d+3}], v{20+nb} offset:{f*1024}")
    stamp(6)
    for k, dst in ((0, 6), (1, 120), (2, 124)):
        A(f"v_lshlrev_b32 v{dst}, 16, v{vPAR+2*k}"); A(f"v_and_b32 v{dst+1}, 0xffff0000, v{vPAR+2*k}")
        A(f"v_lshlrev_b32 v{dst+2}, 16, v{vPAR+2*k+1}"); A(f"v_and_b32 v{dst+3}, 0xffff0000, v{vPAR+2*k+1}")
    for f in range(8):
        A(f"s_waitcnt lgkmcnt({min(15, (7-f)*3)})")
        o = vOWN + 4*f; d = vR + f*12
        A(f"v_pk_add_f32 v[{d}:{d+1}], v[{d}:{d+1}], v[{d+4}:{d+5}]"); A(f"v_pk_add_f32 v[{d+2}:{d+3}], v[{d+2}:{d+3}], v[{d+6}:{d+7}]")
        A(f"v_pk_add_f32 v[{o}:{o+1}], v[{o}:{o+1}], v[{d+8}:{d+9}]"); A(f"v_pk_add_f32 v[{o+2}:{o+3}], v[{o+2}:{o+3}], v[{d+10}:{d+11}]")
        A(f"v_pk_add_f32 v[{o}:{o+1}], v[{o}:{o+1}], v[{d}:{d+1}]"); A(f"v_pk_add_f32 v[{o+2}:{o+3}], v[{o+2}:{o+3}], v[{d+2}:{d+3}]")
    vS = 24; vM = 28; vQ = 32; vPUB = 36; vG = 40; vU = 48; vAc = 52; vCc = 56; vK = 60; vN = 66; vZ = 68
    def dppred(b):
        for sh in (8, 4, 2, 1):
            for i in range(4): A(f"v_add_f32_dpp v{b+i}, v{b+i}, v{b+i} row_ror:{sh} row_mask:0xf bank_mask:0xf")
    for i in range(4): A(f"v_mov_b32 v{vS+i}, 0");
    for i in range(4): A(f"v_mov_b32 v{vQ+i}, 0")
    A(f"s_mov_b64 exec, s[{sMK0}:{sMK0+1}]")
    for f in range(8):
        if f == 1: A(f"s_mov_b64 exec, s[{sMKA}:{sMKA+1}]")
        o = vOWN + 4*f
        A(f"v_pk_add_f32 v[{vS}:{vS+1}], v[{vS}:{vS+1}], v[{o}:{o+1}]"); A(f"v_pk_add_f32 v[{vS+2}:{vS+3}], v[{vS+2}:{vS+3}], v[{o+2}:{o+3}]")
    A("s_mov_b64 exec, -1"); A("s_nop 1")
    dppred(vS)
    for i in range(4): A(f"v_mul_f32 v{vM+i}, s{sINV}, v{vS+i}")
    A(f"s_mov_b64 exec, s[{sMK0}:{sMK0+1}]")
    for f in range(8):
        if f == 1: A(f"s_mov_b64 exec, s[{sMKA}:{sMKA+1}]")
        o = vOWN + 4*f
        A(f"v_pk_add_f32 v[{o}:{o+1}], v[{o}:{o+1}], v[{vM}:{vM+1}] neg_lo:[0,1] neg_hi:[0,1]"); A(f"v_pk_add_f32 v[{o+2}:{o+3}], v[{o+2}:{o+3}], v[{vM+2}:{vM+3}] neg_lo:[0,1] neg_hi:[0,1]")
        A(f"v_pk_fma_f32 v[{vQ}:{vQ+1}], v[{o}:{o+1}], v[{o}:{o+1}], v[{vQ}:{vQ+1}]"); A(f"v_pk_fma_f32 v[{vQ+2}:{vQ+3}], v[{o+2}:{o+3}], v[{o+2}:{o+3}], v[{vQ+2}:{vQ+3}]")
    A("s_mov_b64 exec, -1")
    A(f"v_pk_add_f32 v[{vM}:{vM+1}], v[{vM}:{vM+1}], v[6:7]"); A(f"v_pk_add_f32 v[{vM+2}:{vM+3}], v[{vM+2}:{vM+3}], v[8:9]")
    A("v_cmp_eq_u32 vcc, 1, v1")
    dppred(vQ)
    A(f"v_cndmask_b32 v{vPUB}, v{vM}, v{vM+2}, vcc"); A(f"v_cndmask_b32 v{vPUB+2}, v{vM+1}, v{vM+3}, vcc")
    A(f"v_cndmask_b32 v{vPUB+1}, v{vQ}, v{vQ+2}, vcc"); A(f"v_cndmask_b32 v{vPUB+3}, v{vQ+1}, v{vQ+3}, vcc")
    A("v_cmp_gt_u32 vcc, 2, v1")
    for i in range(4): A(f"v_min_u32 v{vPUB+i}, -2, v{vPUB+i}")
    A("s_mov_b64 exec, vcc")
    A(f"buffer_store_dwordx4 v[{vPUB}:{vPUB+3}], v2, s[{sS}:{sS+3}], 0 offen sc1")
    A("s_mov_b64 exec, -1")
    stamp(7)
    A(f"v_mov_b32 v{vK}, 0xc0135761"); A(f"v_mov_b32 v{vK+1}, 0xc0135761")
    A(f"v_mov_b32 v{vK+2}, 0xbdd2d3e8"); A(f"v_mov_b32 v{vK+3}, 0xbdd2d3e8")
    A(f"v_mov_b32 v{vK+4}, 1.0"); A(f"v_mov_b32 v{vK+5}, 1.0")
    A("v_cmp_eq_u32 vcc, 15, v1"); A(f"v_mov_b32 v{vN}, 0x43000000"); A(f"v_mov_b32 v{vN+1}, 0x42820000")
    A(f"s_mov_b32 s{sT}, {spin}")
    A(f"v_cndmask_b32 v{vN}, v{vN}, v{vN+1}, vcc")
    A("L_poll:")
    A(f"buffer_load_dwordx4 v[{vG}:{vG+3}], v3, s[{sS}:{sS+3}], 0 offen sc1")
    A(f"buffer_load_dwordx4 v[{vG+4}:{vG+7}], v3, s[{sS}:{sS+3}], 0 offen offset:16 sc1")
    A(f"s_sub_u32 s{sT}, s{sT}, 1"); A("s_cbranch_scc1 L_pollout")
    A("s_waitcnt vmcnt(0)")
    A(f"v_max3_u32 v{vU}, v{vG}, v{vG+1}, v{vG+2}"); A(f"v_max3_u32 v{vU+1}, v{vG+3}, v{vG+4}, v{vG+5}")
    A(f"v_max3_u32 v{vU}, v{vU}, v{vG+6}, v{vG+7}"); A(f"v_max_u32 v{vU}, v{vU}, v{vU+1}")
    A(f"v_cmp_eq_u32 vcc, -1, v{vU}"); A("s_nop 1")
    A("s_cbranch_vccnz L_poll")
    A("L_pollout:")
    A("s_waitcnt vmcnt(0)")
    stamp(8)
    for i in range(4): A(f"v_mul_f32 v{vS+i}, v{vN}, v{vG+2*i}")
    A(f"s_mov_b32 s{sT}, 0x3a040ffe")
    A(f"s_mov_b32 s{sT+1}, 0x3727c5ac")
    dppred(vS)
    for i in range(4): A(f"v_mul_f32 v{vS+i}, s{sT}, v{vS+i}")
    for i in range(4): A(f"v_sub_f32 v{vU+i}, v{vG+2*i}, v{vS+i}")
    for i in range(4): A(f"v_mul_f32 v{vQ+i}, v{vN}, v{vU+i}")
    for i in range(4): A(f"v_fma_f32 v{vU+i}, v{vQ+i}, v{vU+i}, v{vG+2*i+1}")
    A(f"v_mov_b32 v{vN+1}, s{sT+1}")
    A("s_nop 0")
    dppred(vU)
    for i in range(4): A(f"v_fma_f32 v{vU+i}, v{vU+i}, s{sT}, v{vN+1}")
    for i in range(4): A(f"v_rsq_f32 v{vU+i}, v{vU+i}")
    for i in range(4): A(f"v_sub_f32 v{vM+i}, v{vM+i}, v{vS+i}")
    for i in range(4): A(f"v_mul_f32 v{vAc+i}, v{vU+i}, v{120+i}")
    for i in range(4): A(f"v_fma_f32 v{vCc+i}, v{vM+i}, v{vAc+i}, v{124+i}")
    for f0 in range(0, 8, 2):
        Z = vZ + (f0 & 2)*12
        z = Z; t = Z + 8; pk = Z + 16
        prs = [(vOWN + 4*f0 + 2*h, h) for h in range(4)]
        for o, h in prs: A(f"v_pk_fma_f32 v[{z+2*h}:{z+2*h+1}], v[{o}:{o+1}], v[{vAc+2*(h&1)}:{vAc+2*(h&1)+1}], v[{vCc+2*(h&1)}:{vCc+2*(h&1)+1}]")
        for o, h in prs: A(f"v_pk_mul_f32 v[{t+2*h}:{t+2*h+1}], v[{z+2*h}:{z+2*h+1}], v[{z+2*h}:{z+2*h+1}]")
        for o, h in prs: A(f"v_pk_fma_f32 v[{t+2*h}:{t+2*h+1}], v[{t+2*h}:{t+2*h+1}], v[{vK+2}:{vK+3}], v[{vK}:{vK+1}]")
        for o, h in prs: A(f"v_pk_mul_f32 v[{t+2*h}:{t+2*h+1}], v[{t+2*h}:{t+2*h+1}], v[{z+2*h}:{z+2*h+1}]")
        for k in range(8): A(f"v_exp_f32 v{t+k}, v{t+k}")
        for o, h in prs: A(f"v_pk_add_f32 v[{t+2*h}:{t+2*h+1}], v[{t+2*h}:{t+2*h+1}], v[{vK+4}:{vK+5}]")
        for k in range(8): A(f"v_rcp_f32 v{t+k}, v{t+k}")
        for o, h in prs: A(f"v_pk_mul_f32 v[{z+2*h}:{z+2*h+1}], v[{t+2*h}:{t+2*h+1}], v[{z+2*h}:{z+2*h+1}]")
        for h in range(4): A(f"v_cvt_pk_bf16_f32 v{pk+h}, v{z+2*h}, v{z+2*h+1}")
        for k in range(2):
            f = f0 + k
            A(f"s_mov_b64 exec, s[{sMK0 if f == 0 else sMKA}:{(sMK0 if f == 0 else sMKA)+1}]")
            A(f"buffer_store_dwordx2 v[{pk+2*k}:{pk+2*k+1}], v{4 + (f>>2)}, s[{sO}:{sO+3}], 0 offen offset:{(f&3)*1024}")
        A("s_mov_b64 exec, -1")
    if stamps:
        stamp(9)
        A("s_waitcnt vmcnt(0)")
        stamp(10); A(f"s_memrealtime s[{sST+30}:{sST+31}]")
        A("s_branch L_stamp")
    A("s_endpgm")
    A(".p2align 6")
    A("L_helper:")
    A(f"s_mul_i32 s{sT}, s{sB}, 4000"); A(f"s_lshl_b32 s{sT+1}, s{sTILE}, 8"); A(f"s_add_u32 s{sT}, s{sT}, s{sT+1}"); A(f"s_lshl_b32 s{sT}, s{sT}, 10")
    A("v_lshrrev_b32 v1, 4, v0"); A("v_lshlrev_b32 v1, 11, v1"); A(f"v_add_u32 v1, s{sT}, v1"); A("v_and_b32 v2, 15, v0")
    for k in range(8):
        A(f"v_xor_b32 v3, {k<<1}, v2"); A("v_lshlrev_b32 v3, 4, v3"); A(f"v_add_u32 v{8+k}, v1, v3")
    A(f"s_lshr_b32 s{sT}, s{sIDX}, 1"); A(f"s_min_u32 s{sT+1}, s{sT}, 14"); A(f"s_lshl_b32 s{sT}, s{sT}, 20"); A(f"s_lshl_b32 s{sT+1}, s{sT+1}, 20")
    A(f"s_and_b32 s{sT+2}, s{sIDX}, 1"); A(f"s_lshl_b32 s{sT+2}, s{sT+2}, 16"); A("v_lshlrev_b32 v3, 10, v0"); A(f"v_add_u32 v3, s{sT+2}, v3")
    A(f"s_lshl_b32 s{sT+2}, s{sNS}, 7"); A(f"v_add_u32 v3, s{sT+2}, v3")
    A(f"v_add_u32 v16, s{sT}, v3"); A(f"v_add_u32 v17, s{sT+1}, v3"); A("v_add_u32 v17, 524288, v17")
    A(f"s_mov_b32 s{sX+2}, 8192000"); A(f"s_mov_b32 s{sX+3}, 0x20000")
    A(f"s_mov_b32 s{sD+2}, 256"); A(f"s_mov_b32 s{sD+3}, 0x20000")
    A("v_mov_b32 v20, -1"); A("v_mov_b32 v21, -1"); A("v_mov_b32 v22, 1")
    A(f"s_lshl_b32 s{sT}, s{sTILE}, 9"); A("v_lshlrev_b32 v23, 3, v0"); A(f"v_add_u32 v23, s{sT}, v23")
    A(f"s_lshl_b32 s{sT}, s{sGRP}, 4"); A(f"v_mov_b32 v24, s{sT}")
    A("s_waitcnt lgkmcnt(0)")
    A(f"s_mov_b32 s{sX}, s{sP}"); A(f"s_mov_b32 s{sX+1}, s{sP+1}")
    A(f"s_mov_b32 s{sW}, s{sP+2}"); A(f"s_mov_b32 s{sW+1}, s{sP+3}")
    A(f"s_mov_b32 s{sD}, s{sP+12}"); A(f"s_mov_b32 s{sD+1}, s{sP+13}")
    A(f"s_lshl_b32 s{sT}, s{sGRP}, 13"); A(f"s_add_u32 s{sS}, s{sP+14}, s{sT}"); A(f"s_addc_u32 s{sS+1}, s{sP+15}, 0")
    if pref:
        A(f"buffer_load_dword v30, v16, s[{sW}:{sW+3}], 0 offen")
    A(f"s_mov_b32 s{sCNT}, 0")
    A("L_hunit:")
    A(f"s_and_b32 s{sT}, s{sCNT}, 1"); A(f"s_mul_i32 m0, s{sT}, {XS}")
    A(f"s_lshl_b32 s{sWO}, s{sT}, 10"); A(f"s_lshr_b32 s{sT+1}, s{sCNT}, 1"); A(f"s_lshl_b32 s{sT+1}, s{sT+1}, 8"); A(f"s_add_u32 s{sWO}, s{sWO}, s{sT+1}")
    if hlat:
        A("s_waitcnt vmcnt(0)"); A("s_memtime s[64:65]")
    for i in range(36):
        if hlat and i == hlat:
            A("s_waitcnt vmcnt(0)"); A("s_memtime s[66:67]"); A("s_waitcnt lgkmcnt(0)"); A("s_sub_u32 s66, s66, s64")
            A(f"v_mov_b32 v40, s66"); A(f"s_lshl_b32 s68, s2, 7"); A(f"s_add_u32 s68, s68, 131072"); A(f"s_lshl_b32 s69, s{sCNT}, 3"); A("s_add_u32 s68, s68, s69")
            A(f"s_add_u32 s72, s{sP+14}, 0x8000000"); A(f"s_addc_u32 s73, s{sP+15}, 0"); A("s_mov_b32 s74, 0x100000"); A("s_mov_b32 s75, 0x20000")
            A("v_mov_b32 v41, 0"); A("s_mov_b64 exec, 1"); A("buffer_store_dword v40, v41, s[72:75], s68 offen"); A("s_mov_b64 exec, -1")
        if i == 20:
            A(f"s_cmp_lg_u32 s{sLAST}, 0"); A("s_cbranch_scc1 L_hskip")
        A(f"buffer_load_dwordx4 v{8 + ((i>>1)&7)}, s[{sX}:{sX+3}], s{sWO} offen lds")
        A("s_add_u32 m0, m0, 1024"); A(f"s_add_u32 s{sWO}, s{sWO}, 8192")
        if i >= xwin and i < 35:
            A(f"s_cmp_eq_u32 s{sCNT}, 0"); A(f"s_cbranch_scc1 L_hnw{i}"); A(f"s_waitcnt vmcnt({xwin})"); A(f"L_hnw{i}:")
    A("L_hskip:")
    if pref:
        A(f"s_add_u32 s{sT}, s{sCNT}, {prefd}"); A(f"s_cmp_ge_u32 s{sT}, 8"); A("s_cbranch_scc1 L_hnopf")
        A(f"s_lshr_b32 s{sT+1}, s{sT}, 1"); A(f"s_lshl_b32 s{sT+1}, s{sT+1}, 17")
        A(f"s_and_b32 s{sT}, s{sT}, 1"); A("s_cbranch_scc1 L_hpf1")
        A(f"buffer_load_dword v30, v16, s[{sW}:{sW+3}], s{sT+1} offen"); A("s_branch L_hpfd")
        A("L_hpf1:"); A(f"buffer_load_dword v30, v17, s[{sW}:{sW+3}], s{sT+1} offen")
        A("L_hpfd:")
        A("s_waitcnt vmcnt(1)"); A("s_branch L_hbar")
        A("L_hnopf:")
    A("s_waitcnt vmcnt(0)")
    A("L_hbar:")
    A("s_barrier")
    A(f"s_cmp_lg_u32 s{sCNT}, 0"); A("s_cbranch_scc1 L_hnext")
    A(f"buffer_store_dwordx2 v[20:21], v23, s[{sS}:{sS+3}], 0 offen sc1")
    A("s_waitcnt vmcnt(0)")
    A("s_mov_b64 exec, 1")
    A(f"buffer_atomic_add v22, v24, s[{sD}:{sD+3}], 0 offen sc1")
    A("s_mov_b64 exec, -1")
    A("L_hnext:")
    A(f"s_add_u32 s{sCNT}, s{sCNT}, 1"); A(f"s_cmp_lt_u32 s{sCNT}, 8"); A("s_cbranch_scc1 L_hunit")
    A(f"s_mov_b32 s{sT}, {spin}")
    A("L_hpoll:")
    A(f"buffer_load_dword v25, v24, s[{sD}:{sD+3}], 0 offen sc1")
    A(f"s_sub_u32 s{sT}, s{sT}, 1"); A("s_cbranch_scc1 L_hpollout")
    A("s_waitcnt vmcnt(0)")
    A(f"v_readfirstlane_b32 s{sT+1}, v25"); A(f"s_cmp_ge_u32 s{sT+1}, 16"); A("s_cbranch_scc1 L_hpollout")
    A("s_sleep 4"); A("s_branch L_hpoll")
    A("L_hpollout:")
    A("s_waitcnt vmcnt(0)")
    A("s_barrier")
    A("L_done:"); A("s_endpgm")
    if stamps:
        A("L_stamp:")
        A("s_waitcnt lgkmcnt(0)")
        A(f"s_add_u32 s{sX}, s{sP+14}, 0x8000000"); A(f"s_addc_u32 s{sX+1}, s{sP+15}, 0"); A(f"s_mov_b32 s{sX+2}, 0x100000"); A(f"s_mov_b32 s{sX+3}, 0x20000")
        A(f"s_getreg_b32 s{sST+22}, hwreg(HW_REG_XCC_ID)"); A(f"s_getreg_b32 s{sST+23}, hwreg(HW_REG_HW_ID)")
        A(f"s_lshl_b32 s{sT}, s2, 2"); A(f"s_add_u32 s{sT}, s{sT}, s{sWV}"); A(f"s_lshl_b32 s{sT}, s{sT}, 7")
        for i in range(32): A(f"v_mov_b32 v{24+i}, s{sST+i}")
        A("v_mov_b32 v2, 0"); A("s_mov_b64 exec, 1")
        for i in range(8): A(f"buffer_store_dwordx4 v[{24+4*i}:{27+4*i}], v2, s[{sX}:{sX+3}], s{sT} offen offset:{16*i}")
        A("s_waitcnt vmcnt(0)"); A("s_endpgm")
    A('.section .rodata,"a"'); A(".p2align 6"); A(f".amdhsa_kernel {KN}")
    A("  .amdhsa_next_free_vgpr 256"); A("  .amdhsa_next_free_sgpr 102"); A("  .amdhsa_accum_offset 160")
    A("  .amdhsa_group_segment_fixed_size 0"); A("  .amdhsa_kernarg_size 64"); A("  .amdhsa_user_sgpr_count 2")
    A("  .amdhsa_user_sgpr_kernarg_segment_ptr 1"); A("  .amdhsa_system_sgpr_workgroup_id_x 1"); A(".end_amdhsa_kernel")
    open(name + ".s", "w").write("\n".join(L) + "\n")
    build(name + ".s")
    return name

if __name__ == "__main__":
    gen("k1"); gen("k1s", stamps=1); gen("k1h1", stamps=1, hlat=1); gen("k1h9", stamps=1, hlat=9); gen("k1h19", stamps=1, hlat=19, xwin=40)
```

```python
import sys, os, re
from build import build
from gen import Stream, resolve, prune_waits, emit, KN, HDR

XS = 36864
WBASE = 2*XS
RING = 5
RB = RING*4096
LDS = WBASE + 4*RB
TS = 124

class Gap:
    def __init__(s):
        s.mfma = None; s.mneed = []; s.mem = None; s.valu = []; s.nds = []; s.nvm = []; s.scal = []; s.need = None

def gen(name, stamps=0, exact=0, stampset=0, spin=1<<20, pref=1, xmax=2, lat=8, nsets=26, semi=(), noval=0, nodma=0, xpos=(10, 40), nox=0, nowait=0, trp=(2, 12), dmp=((20,21,22,23),(30,31,32,33)), pfpos=24, nomfma=0, xfl='', wfl='', pffl='', xsched=None, xpf=1, atk=6, notr=0, nxr=0, vmcost=2, half=0):
    L = []; A = L.append
    A(HDR.rstrip("\n"))
    A("; grid=ceil(out_elems/256), lds=0). Harness parses it; keep it on one line.")
    A(f"; @launch grid=(256,1,1) block=(256,1,1) lds={LDS}")
    A('.amdgcn_target "amdgcn-amd-amdhsa--gfx950"')
    A(".text"); A(f".globl {KN}"); A(".p2align 8"); A(f".type {KN},@function"); A(f"{KN}:")
    vAA = 1; vWO = 4; vVX = 8; vPF = 17; vSEL = 19; vTA = 20; vT = 40; vH = 52; vXS = 148
    vPAR = 4; vRW = 10; vRR = 13; vCA = 16; vONE = 17; vCNT = 18; vAT = 15
    sX = 4; sW = 8; sS = 12; sO = 16; sD = 20
    sWV = 24; sNS = 25; sTILE = 26; sB = 27; sGRP = 28; sLAST = 29; sM0 = 30; sWC = 35; sWO = 36; sCNT = 37; sT = 38
    sMKA = 42; sMK4 = 44; sINV = 46; sIDX = 47
    sP = 48
    sST = 64
    sDL = 96
    sXM = 41; sXQ = 3; sXO = 101; sPFO = 2
    vPX = 252; sPX = 0
    if xsched is None: xsched = [(c >> 1, xpos[c & 1]) for c in range(9)]
    PROD = {'Q2': 0, 'Q1': 1, 'S': 2}
    def accr(prod, f, nb): return (PROD[prod]*16 + f*4 + nb)*4
    def acc(prod, f, nb): b = accr(prod, f, nb); return f"a[{b}:{b+3}]"
    def hreg(which, buf, nb): return vH + ((which*2 + (0 if notr else buf))*4 + ((nb & 1) if half else nb))*4
    def stamp(k, S=None):
        if not stamps: return
        if stampset == 1:
            if k in (7, 8): return
            if k >= 20: k -= 13
        elif k >= 20: return
        s = f"s_memtime s[{sST+2*k}:{sST+2*k+1}]"
        (S.i if S else A)(s)
    TAPS = [(0, j) for j in range(16)] + [(1, j) for j in range(15)]
    def tapoff(t):
        c = 0
        if t >= 31: t -= 31; c = 131072
        p, j = TAPS[t]
        return (2*j+p)*524288 + c
    alloc = {}
    def R(n): return vXS + 4*alloc[n if not nxr else (n[0], 0, n[2] % 4)]
    def vr(b, n=4): return f"v[{b}:{b+n-1}]"
    def tr(t, which, buf, nb, h):
        d = hreg(which, buf, nb) + 2*h
        return ('ds', ('H', which, buf, nb), f"ds_read_b64_tr_b16 v[{d}:{d+1}], v{vTA + (t % RING)*4 + nb} offset:{h*512}")
    def xread(n):
        ty, p, g = n; gam = 2*g + (1 if ty == 'U' else 0)
        return ('ds', n, lambda: f"ds_read_b128 {vr(R(n))}, v{vAA + (gam>>3)} offset:{p*XS + (gam&7)*256}")
    def wdma(t, d): return ('vm', ('W', t % 31), f"buffer_load_dwordx4 v{vWO+d}, s[{sW}:{sW+3}], s{sWO} offen offset:{d*1024} {wfl} lds")
    def xdma(p, c): return ('vm', ('XD', p), f"buffer_load_dwordx4 v{vVX+c}, s[{sX}:{sX+3}], s{sXO} offen {xfl} lds")
    tcount = [0]
    def addops(a, b, o):
        i = tcount[0]; tcount[0] += 1
        T = vT + 6*(i & 1)
        if exact:
            return [lambda: f"v_lshlrev_b32 v{T}, 16, v{a()}", lambda: f"v_lshlrev_b32 v{T+1}, 16, v{b()}",
                    lambda: f"v_and_b32 v{T+2}, s{sMSK}, v{a()}", lambda: f"v_and_b32 v{T+3}, s{sMSK}, v{b()}",
                    lambda: f"v_add_f32 v{T}, v{T}, v{T+1}", lambda: f"v_add_f32 v{T+2}, v{T+2}, v{T+3}",
                    lambda: f"v_lshlrev_b32 v{T+4}, 16, v{a()+1}", lambda: f"v_lshlrev_b32 v{T+5}, 16, v{b()+1}",
                    lambda: f"v_cvt_pk_bf16_f32 v{o()}, v{T}, v{T+2}",
                    lambda: f"v_and_b32 v{T+1}, s{sMSK}, v{a()+1}", lambda: f"v_and_b32 v{T+3}, s{sMSK}, v{b()+1}",
                    lambda: f"v_add_f32 v{T+4}, v{T+4}, v{T+5}", lambda: f"v_add_f32 v{T+1}, v{T+1}, v{T+3}",
                    lambda: f"v_cvt_pk_bf16_f32 v{o()+1}, v{T+4}, v{T+1}"]
        ops = [lambda: f"v_lshlrev_b64 v[{T}:{T+1}], 16, v[{a()}:{a()+1}]", lambda: f"v_lshlrev_b64 v[{T+2}:{T+3}], 16, v[{b()}:{b()+1}]",
               lambda: f"v_add_f32 v{T+4}, v{a()}, v{b()}", lambda: f"v_add_f32 v{T+5}, v{a()+1}, v{b()+1}",
               lambda: f"v_add_f32 v{T}, v{T}, v{T+2}", lambda: f"v_add_f32 v{T+1}, v{T+1}, v{T+3}"]
        if i & 1: ops.append(lambda: f"v_cvt_pk_bf16_f32 v{o()}, v{T}, v{T+4}")
        else: ops.append(lambda: f"v_perm_b32 v{o()}, v{T+4}, v{T}, v{vSEL}")
        ops.append(lambda: f"v_perm_b32 v{o()+1}, v{T+5}, v{T+1}, v{vSEL}")
        return ops
    sMSK = 1
    def hsjob(buf, nb, half): return addops(lambda: hreg(0, buf, nb)+2*half, lambda: hreg(1, buf, nb)+2*half, lambda: hreg(2, buf, nb)+2*half)
    def sjob(p, g, half): return addops(lambda: R(('U', p, g))+2*half, lambda: R(('E', p, g+1))+2*half, lambda: R(('S', p, g))+2*half)

    def redloc(idx):
        if idx < 20: return 0, idx*1024
        if idx < 28: return 1, (idx-20)*1024
        return 2, (idx-28)*1024
    def redidx(prod, f, nb): return {'Q1': 0, 'Q2': 1, 'S': 2}[prod]*12 + (nb-1)*4 + f
    def redw(prod, f, nb):
        a, o = redloc(redidx(prod, f, nb))
        if a == 2: a = 1; o += XS
        return ('ds', ('R',), f"ds_write_b128 v{vRW+a}, {acc(prod, f, nb)} offset:{o}")
    class Sec: pass
    def section(p, final=False):
        S = Sec(); G = []; S.G = G; S.p = p; S.uses = {}; S.jobs = []; S.sreq = []
        def use(n, g): S.uses.setdefault(n, []).append(g)
        base = []
        t0 = 16*p
        for k in range(8):
            base.append(len(G))
            single = (p == 1 and k == 7)
            sd = (p, k) in semi
            prods = [('Q2', 0, 'E')] + ([] if single else [('Q1', 1, 'U')])
            if single: prods += [('S', 0, 'S')]
            elif sd: prods += [('S', 0, 'S'), ('S', 1, 'S')]
            else: prods += [('S', 2, 'S')]
            for prod, which, ty in prods:
                for m in range(16):
                    f = m >> 2; nb = m & 3
                    if f & 1: nb = 3-nb
                    g = Gap(); n = (ty, p, k+f); hb = hreg(which, k & 1, nb)
                    n2 = n
                    if noval == 2 and ty == 'S':
                        n2 = ('E', p, k+f+1); hb = hreg(0, k & 1, nb); use(n2, len(G))
                    g.mfma = (lambda prod=prod, f=f, nb=nb, n=n2, hb=hb: f"v_mfma_f32_16x16x32_bf16 {acc(prod,f,nb)}, {vr(hb)}, {vr(R(n))}, {acc(prod,f,nb)}")
                    if ty != 'S' and (m & 3) == 0: g.mneed.append(n)
                    if which < 2 and f == 0 and not (half and nb >= 2): g.mneed.append(('H', which, k & 1, nb))
                    g.prod = prod; g.f = f; g.nb = nb; g.k = k; g.which = which
                    use(n, len(G)); G.append(g)
        NG = len(G); base.append(NG); S.base = base
        def put(gi, item):
            while G[gi].mem is not None: gi += 1
            G[gi].mem = item; return gi
        issue = {}
        m0users = []; wousers = []
        def putds(gi, item):
            gi = put(gi, item); issue[item[1]] = gi
            if item[1][0] in 'EU': use(item[1], gi)
            return gi
        def job(ops, rdy, dl, needs, reads=(), writes=()):
            S.jobs.append(dict(ops=list(ops), rdy=rdy, dl=dl, needs=list(needs), reads=list(reads), writes=list(writes)))
        q = 1-p
        for k in range(8):
            b = base[k]; npair = base[k+1]-b
            if k < 7: nxt = [(t0+2*k+2, 0)] + ([(t0+2*k+3, 1)] if not (p == 1 and k == 6) else [])
            else: nxt = [(t0+16-p, 0), (t0+17-p, 1)] if not final else []
            nb_ = (k+1) & 1
            if k <= 6:
                putds(b+0, xread(('U', p, k+4))); putds(b+1, xread(('E', p, k+5)))
            elif not final:
                putds(b+0, xread(('U', q, 3))); putds(b+1, xread(('E', q, 4)))
            trpos = {0: trp[0], 1: trp[1]} if npair >= 48 else {0: 2, 1: 12}
            dmapos = dmp if npair >= 48 else ((20,21,22,23),(26,27,28,29))
            for t, which in nxt:
                first = None
                for nb in range(2 if half else 4):
                    for h in range(2):
                        gi = putds(b+trpos[which]+2*nb+h, tr(t, which, nb_, nb, h))
                        if first is None: first = gi
                if not nodma and not nowait: G[first].nvm.append(('W', t % 31))
                S.lasttr = getattr(S, 'lasttr', {}); S.lasttr[t % RING] = gi
            if not final:
                for c, (xk, xp) in enumerate(xsched):
                    if xk != k or nox: continue
                    gi = put(b+xp, xdma(q, c)); m0users.append((gi, f"s_add_u32 m0, s{sXM}, {q*XS + c*4096}"))
                if k == 0 and pref:
                    gi = put(b+pfpos, ('vm', ('PF',), f"buffer_load_dword a{192+q}, v{vPF+q}, s[{sW}:{sW+3}], s{sPFO} offen {pffl}"))
                    S.sreq.append((0, gi-1, [f"s_add_u32 s{sPFO}, s{sWC}, {131072 if p == 1 else 0}"]))
                if k == 0 and xpf:
                    gi = put(b+pfpos, ('vm', ('PX',), f"buffer_load_dword a{194+q}, v{vPX}, s[{sX}:{sX+3}], s{sPX} offen {pffl}"))
                    S.sreq.append((0, gi-1, [f"s_add_u32 s{sPX}, s{sXQ}, {256 + 1024*p}"]))
            for t, which in nxt:
                tn = t + RING
                if (final and tn > 30) or nodma: continue
                gis = [put(b+dmapos[which][d], wdma(tn, d)) for d in ((0, 2) if half else range(4))]
                G[gis[0]].nds.append(('H', which, nb_, 1 if half else 3))
                for gi in gis: m0users.append((gi, f"s_mov_b32 m0, s{sM0 + tn % RING}"))
                wousers.append((gis[0], gis[-1], f"s_add_u32 s{sWO}, s{sWC}, {tapoff(tn)}"))
            if final and k == atk:
                put(b+11, ('vm', ('AT',), f"buffer_atomic_add v{vONE}, v{vAT}, s[{sD}:{sD+3}], 0 offen sc1"))
            if k == 6:
                G[b+10].nds += [('U', p, 10), ('E', p, 11)]
                if not final and not nox and nowait < 2: G[b+10].nvm.append(('XD', q))
                G[b+10].scal.append("s_barrier")
                if not final:
                    pos = [24, 25, 26, 34, 35, 38, 39] if p == 0 else [12, 13, 14, 15, 16, 17, 18]
                    for n, gp in zip([('E', q, 0), ('U', q, 0), ('E', q, 1), ('U', q, 1), ('E', q, 2), ('U', q, 2), ('E', q, 3)], pos):
                        putds(b+gp, xread(n))
        def firstuse(pred):
            return min(i for i, g in enumerate(G) if pred(g))
        for k in range(8):
            b = base[k]
            hasHs = not (p == 1 and k == 7) and (p, k) not in semi
            if hasHs:
                for nb in (((2, 3) if k == 0 else range(4)) if not half else (() if k == 0 else (0, 1))):
                    dl = firstuse(lambda g: g.k == k and g.which == 2 and g.nb == nb) - 2
                    if k == 0: rdy = 0
                    else: rdy = base[k-1] + trp[1] + 2*nb + 1 + lat
                    for hf in range(2): job(hsjob(k & 1, nb, hf), rdy, dl, [('H', 0, k & 1, nb), ('H', 1, k & 1, nb)])
            if k <= 6:
                g_ = k+4
                dl = min(S.uses[('S', p, g_)]) - 2
                rdy = max(issue[('U', p, g_)], issue[('E', p, g_+1)]) + lat
                for hf in (range(2) if not (half and k < 4) else (0, 1, 0, 1)): job(sjob(p, g_, hf), rdy, dl, [('U', p, g_), ('E', p, g_+1)], reads=[('U', p, g_), ('E', p, g_+1)], writes=[('S', p, g_)])
        if not final:
            for g_ in range(4):
                rdy = max(issue[('U', q, g_)], issue[('E', q, g_+1)]) + lat
                for hf in range(2): job(sjob(q, g_, hf), rdy, NG-1, [('U', q, g_), ('E', q, g_+1)], reads=[('U', q, g_), ('E', q, g_+1)], writes=[('S', q, g_)])
            if (q, 0) not in semi:
                for nb in (0, 1):
                    for hf in range(2): job(hsjob(0, nb, hf), base[7] + 12 + 2*nb + 1 + lat, NG-1, [('H', 0, 0, nb), ('H', 1, 0, nb)])
            if p == 1:
                for sg in range(RING):
                    job([(lambda sg=sg, nb=nb: f"v_add_u32 v{vTA+sg*4+nb}, s{sDL+sg}, v{vTA+sg*4+nb}") for nb in range(4)], S.lasttr[sg] + 1, NG-1, [])
        if final:
            S.sreq.append((0, 8, [f"s_mul_i32 s{sT}, s{sWV}, {RB}"])); S.sreq.append((9, 19, [f"s_add_u32 s{sT}, s{sT}, {WBASE}"]))
            S.sreq.append((0, 19, [f"s_lshl_b32 s{sT+1}, s{sWV}, 13"])); S.sreq.append((0, 19, [f"s_lshl_b32 s{sT+2}, s{sGRP}, 4"]))
            job([lambda: "v_lshlrev_b32 v8, 4, v0", lambda: f"v_mov_b32 v{vCA}, s{sT+2}", lambda: f"v_add_u32 v{vRW}, s{sT}, v8", lambda: f"v_add_u32 v{vRW+1}, s{sT+1}, v8",
                 lambda: f"v_mov_b32 v{vONE}, 1", lambda: f"v_lshl_add_u32 v{vAT}, v{vRW+1}, 8, v{vCA}"], 22, base[5], [])
            lastw = {}
            for i, g in enumerate(G): lastw[(g.prod, g.f, g.nb)] = i
            S.tailw = []
            for prod in ('Q1', 'Q2', 'S'):
                for f in range(4):
                    for nb in range(1, 4):
                        gi = max(lastw[(prod, f, nb)] + 8, base[6] + 12)
                        while gi < NG and G[gi].mem is not None: gi += 1
                        if gi < NG: G[gi].mem = redw(prod, f, nb)
                        else: S.tailw.append((lastw[(prod, f, nb)], redw(prod, f, nb)))
        cap = [2 - ((vmcost if g.mem[0] == 'vm' else 1) if g.mem else 0) for g in G]
        pend = sorted(S.jobs, key=lambda j: (j['dl'], j['rdy']))
        for j in pend: j['pos'] = 0
        cur = None
        for gi in range(NG):
            n = cap[gi]
            dls = sorted(set(j['dl'] for j in pend))
            dem = 0
            for d in dls:
                dem = sum(len(j['ops']) - j['pos'] for j in pend if j['dl'] <= d)
                sup = sum(cap[x] + xmax for x in range(gi+1, d+1))
                n = max(n, dem - sup)
            while n > 0:
                if cur is None:
                    c = [j for j in pend if j['rdy'] <= gi]
                    if not c: break
                    cur = c[0]; cur['start'] = gi
                    G[gi].nds += cur['needs']
                G[gi].valu.append(cur['ops'][cur['pos']]); cur['pos'] += 1; n -= 1
                if cur['pos'] == len(cur['ops']):
                    assert gi <= cur['dl'], ("deadline miss", p, gi, cur['dl'])
                    for x in cur['reads']: use(x, gi)
                    for x in cur['writes']: use(x, cur['start']); use(x, gi)
                    pend.remove(cur); cur = None
        assert not pend, ("unscheduled", len(pend))
        S.idle = sum(max(0, cap[i] - len(G[i].valu)) for i in range(NG)); S.extra = sum(max(0, len(G[i].valu) - cap[i]) for i in range(NG))
        m0users.sort(); wousers.sort()
        prev = -1; ptxt = None
        for gi, txt in m0users:
            if txt != ptxt: S.sreq.append((prev if prev >= 0 else 0, gi-1, [txt], prev))
            prev = gi; ptxt = txt
        pw_ = -1
        for first, last, txt in wousers:
            assert pw_ < first
            S.sreq.append((pw_ if pw_ >= 0 else 0, first-1, [txt], pw_)); pw_ = last
        S.lastm0 = prev
        return S
    U0 = section(0); U1 = section(1); FN = section(1, final=True)
    N0 = len(U0.G); N1 = len(U1.G)
    def intervals(secs):
        iv = {}
        off = 0
        for s in secs:
            for n, u in s.uses.items():
                iv.setdefault(n, []).extend([x + off for x in u])
            off += len(s.G)
        return iv
    entry0 = [('E', 0, g) for g in range(5)] + [('U', 0, g) for g in range(4)] + [('S', 0, g) for g in range(4)]
    busy = [[] for _ in range(nsets)]
    def free(sidx, a, b_): return all(b_ < x or a > y for x, y in busy[sidx])
    iv = intervals([U0, U1])
    segs = {}
    for n, u in iv.items():
        if n in entry0:
            lo = [x for x in u if x < N0]; hi = [x for x in u if x >= N0]
            segs[n] = [(0, max(lo))] + [(min(hi), N0+N1)]
        else: segs[n] = [(min(u), max(u))]
    order = sorted(segs, key=lambda n: (0 if n in entry0 else 1, segs[n][-1][0] if n in entry0 else segs[n][0][0]))
    for n in order:
        for sidx in range(nsets):
            if all(free(sidx, a, b_) for a, b_ in segs[n]):
                alloc[n] = sidx; busy[sidx] += segs[n]; break
        else: raise RuntimeError(("alloc fail", n))
    ivf = intervals([U0, FN]); chk = {}
    for n, u in ivf.items():
        a = 0 if n in entry0 else min(u)
        chk.setdefault(alloc[n], []).append((a, max(u), n))
    for sidx, l in chk.items():
        l.sort()
        for (a, b_, n), (c, d, m) in zip(l, l[1:]): assert b_ < c, ("final overlap", n, m)
    print(name, "sets used", max(alloc.values())+1, "idle/extra", [(s.idle, s.extra) for s in (U0, U1, FN)])
    def lin(S, nextneeds):
        St = Stream()
        for i, g in enumerate(S.G):
            St.items.append(dict(k='i', s=g.mfma() if not nomfma else None))
            nd = list(g.nds) + (S.G[i+1].mneed if i+1 < len(S.G) else nextneeds)
            St.need(ds=nd, vm=g.nvm); g.need = St.items[-1]
            g.slot = dict(k='i', s=None); St.items.append(g.slot)
            if g.mem:
                kind, tag, txt = g.mem
                St.items.append(dict(k=kind, tag=tag, s=(txt() if callable(txt) else txt) if not ((nomfma and kind == 'ds') or (notr and tag[0] == 'H') or (nxr and tag[0] in 'EU')) else 's_nop 0'))
            for v in g.valu:
                if not noval or not re.match(r'v_(lshlrev_b64|add_f32|perm|cvt_pk|and_b32|lshlrev_b32 v\d+, 16)', v()): St.i(v())
        return St
    S0 = lin(U0, U1.G[0].mneed); S1 = lin(U1, U0.G[0].mneed); SF = lin(FN, [])
    U0.sreq.append((0, U0.base[0]+9, [f"s_add_u32 s{sXO}, s{sXQ}, 1024"]))
    U1.sreq.append((0, U1.base[0]+9, [f"s_add_u32 s{sXO}, s{sXQ}, 256"]))
    for sg in range(RING): U0.sreq.append((40+4*sg, N0-1, [f"s_sub_u32 s{sDL+sg}, s{sM0+(sg+1) % RING}, s{sM0+sg}"], 'early'))
    U1.sreq.append((U1.base[1], U1.base[5], [f"s_add_u32 s{sXQ}, s{sXQ}, 256"]))
    U1.sreq.append((U1.base[1], U1.base[5], [f"s_sub_u32 s{sCNT}, s{sCNT}, 1"]))

    A("s_cmp_ge_u32 s2, 256"); A("s_cbranch_scc1 L_done")
    A(f"s_load_dwordx16 s[{sP}:{sP+15}], s[0:1], 0")
    if stamps: A(f"s_memtime s[{sST}:{sST+1}]"); A(f"s_memrealtime s[{sST+28}:{sST+29}]")
    A("v_lshrrev_b32 v1, 6, v0"); A("v_and_b32 v0, 63, v0")
    A(f"s_and_b32 s{sNS}, s2, 7"); A(f"s_lshr_b32 s{sIDX}, s2, 3")
    A(f"v_readfirstlane_b32 s{sWV}, v1")
    A(f"s_and_b32 s{sTILE}, s{sIDX}, 15"); A(f"s_lshr_b32 s{sB}, s{sIDX}, 4")
    A(f"s_mul_i32 s{sT}, s{sB}, 4000"); A(f"s_mul_i32 s{sT+1}, s{sTILE}, {2*TS}"); A(f"s_add_u32 s{sT}, s{sT}, s{sT+1}")
    A(f"s_lshl_b32 s{sT+1}, s{sWV}, 3"); A(f"s_add_u32 s{sT}, s{sT}, s{sT+1}"); A(f"s_lshl_b32 s{sT}, s{sT}, 10")
    A("v_lshrrev_b32 v2, 4, v0"); A("v_lshlrev_b32 v3, 11, v2"); A(f"v_add_u32 v3, s{sT}, v3")
    A(f"s_and_b32 s{sT+1}, s{sWV}, 2"); A("v_and_b32 v40, 15, v0"); A(f"v_xor_b32 v41, s{sT+1}, v40")
    for c in range(4):
        A(f"v_xor_b32 v42, {4*c}, v41"); A(f"v_lshl_add_u32 v{vVX+c}, v42, 4, v3")
        if c: A(f"v_add_u32 v{vVX+c}, {32768*c}, v{vVX+c}")
    for c in range(4, 9): A(f"v_add_u32 v{vVX+c}, {32768*4}, v{vVX+c-4}")
    A(f"s_lshl_b32 s{sXM}, s{sWV}, 10")
    A(f"s_mov_b32 s{sX+2}, 8192000"); A(f"s_mov_b32 s{sX+3}, 0x20000")
    A(f"s_mov_b32 s{sW+2}, 16252928"); A(f"s_mov_b32 s{sW+3}, 0x20000")
    A("v_lshrrev_b32 v42, 3, v0"); A("v_and_b32 v43, 7, v0"); A("v_and_b32 v44, 2, v42"); A("v_xor_b32 v43, v43, v44")
    A(f"s_lshl_b32 s{sT}, s{sWV}, 15"); A(f"s_lshl_b32 s{sT+1}, s{sNS}, 7"); A(f"s_add_u32 s{sT}, s{sT}, s{sT+1}")
    A("v_lshlrev_b32 v42, 10, v42"); A(f"v_add_u32 v42, s{sT}, v42")
    A("v_lshlrev_b32 v44, 4, v43"); A("v_xor_b32 v45, 64, v44")
    A(f"v_add_u32 v{vWO}, v42, v44"); A(f"v_add_u32 v{vWO+1}, v42, v45"); A(f"v_add_u32 v{vWO+1}, 7168, v{vWO+1}")
    A(f"v_add_u32 v{vWO+2}, {2*7168}, v{vWO}"); A(f"v_add_u32 v{vWO+3}, {2*7168}, v{vWO+1}")
    A(f"s_mul_i32 s{sT}, s{sWV}, {RB}"); A(f"s_add_u32 s{sM0}, s{sT}, {WBASE}")
    A(f"s_mov_b32 s{sWC}, 0"); A(f"s_mov_b32 s{sXO}, 0"); A(f"s_mov_b32 m0, s{sXM}")
    A("s_waitcnt lgkmcnt(0)")
    A(f"s_mov_b32 s{sX}, s{sP}"); A(f"s_mov_b32 s{sX+1}, s{sP+1}")
    A(f"s_mov_b32 s{sW}, s{sP+2}"); A(f"s_mov_b32 s{sW+1}, s{sP+3}")
    stamp(20)
    P = Stream()
    def padd(it):
        kind, tag, txt = it
        P.items.append(dict(k=kind, tag=tag, s=txt() if callable(txt) else txt))
    def pw(t):
        P.i(f"s_add_u32 m0, s{sM0}, {4096*(t % RING)}"); P.i(f"s_mov_b32 s{sWO}, {tapoff(t)}")
        for d in range(4): padd(wdma(t, d))
    for c in range(9):
        padd(xdma(0, c))
        if c < 8: P.i(f"s_add_u32 m0, m0, 4096"); P.i("s_nop 0")
    pw(0); pw(1)
    P.i(f"s_lshr_b32 s{sT}, s{sIDX}, 1"); P.i(f"s_min_u32 s{sT+1}, s{sT}, 14"); P.i(f"s_lshl_b32 s{sT}, s{sT}, 20"); P.i(f"s_lshl_b32 s{sT+1}, s{sT+1}, 20")
    P.i(f"s_and_b32 s{sT+2}, s{sIDX}, 1"); P.i(f"s_lshl_b32 s{sT+2}, s{sT+2}, 2"); P.i(f"s_add_u32 s{sT+2}, s{sT+2}, s{sWV}"); P.i(f"s_lshl_b32 s{sT+2}, s{sT+2}, 14")
    P.i("v_lshrrev_b32 v42, 2, v0"); P.i("v_lshlrev_b32 v42, 10, v42"); P.i(f"v_add_u32 v42, s{sT+2}, v42")
    P.i(f"s_lshl_b32 s{sT+2}, s{sNS}, 7"); P.i(f"v_add_u32 v42, s{sT+2}, v42")
    P.i(f"v_add_u32 v{vPF}, s{sT}, v42"); P.i(f"v_add_u32 v{vPF+1}, s{sT+1}, v42"); P.i(f"v_add_u32 v{vPF+1}, 524288, v{vPF+1}")
    if pref: P.vm(('PF',), f"buffer_load_dword a192, v{vPF}, s[{sW}:{sW+3}], 0 offen")
    if xpf:
        P.i(f"s_mul_i32 s{sT}, s{sWV}, 9"); P.i(f"v_add_u32 v42, s{sT}, v0"); P.i("v_lshrrev_b32 v43, 1, v42"); P.i("v_and_b32 v42, 1, v42")
        P.i("v_lshlrev_b32 v43, 11, v43"); P.i("v_lshl_add_u32 v43, v42, 7, v43")
        P.i(f"s_mul_i32 s{sT}, s{sB}, 4000"); P.i(f"s_mul_i32 s{sT+1}, s{sTILE}, {2*TS}"); P.i(f"s_add_u32 s{sT}, s{sT}, s{sT+1}")
        P.i(f"s_mul_i32 s{sT+1}, s{sNS}, 36"); P.i(f"s_add_u32 s{sT}, s{sT}, s{sT+1}"); P.i(f"s_lshl_b32 s{sT}, s{sT}, 10")
        P.i(f"v_add_u32 v43, s{sT}, v43"); P.i("v_cmp_gt_u32 vcc, 9, v0"); P.i(f"v_mov_b32 v{vPX}, 0x40000000"); P.i(f"s_mov_b32 s{sPX}, 1024")
        P.i(f"v_cndmask_b32 v{vPX}, v{vPX}, v43, vcc")
        P.vm(('PX',), f"buffer_load_dword a194, v{vPX}, s[{sX}:{sX+3}], s{sPX} offen")
    pw(2); pw(3); pw(4)
    P.i(f"s_lshl_b32 s{sGRP}, s{sB}, 3"); P.i(f"s_add_u32 s{sGRP}, s{sGRP}, s{sNS}")
    P.i(f"s_lshl_b32 s{sT}, s{sGRP}, 13"); P.i(f"s_add_u32 s{sS}, s{sP+14}, s{sT}"); P.i(f"s_addc_u32 s{sS+1}, s{sP+15}, 0")
    P.i(f"s_mov_b32 s{sS+2}, 8192"); P.i(f"s_mov_b32 s{sS+3}, 0x20000")
    P.i(f"s_lshl_b32 s{sT}, s{sTILE}, 9"); P.i(f"s_lshl_b32 s{sT+1}, s{sWV}, 7"); P.i(f"s_add_u32 s{sT}, s{sT}, s{sT+1}")
    P.i("v_lshlrev_b32 v42, 4, v0"); P.i(f"v_add_u32 v42, s{sT}, v42")
    for i in range(4): P.i(f"v_mov_b32 v{44+i}, -1")
    P.i("s_mov_b64 exec, 0xff")
    P.vm(('CLR',), f"buffer_store_dwordx4 v[44:47], v42, s[{sS}:{sS+3}], 0 offen sc1")
    P.i("s_mov_b64 exec, -1")
    P.i(f"s_mov_b32 s{sD}, s{sP+12}"); P.i(f"s_mov_b32 s{sD+1}, s{sP+13}"); P.i(f"s_mov_b32 s{sD+2}, 256"); P.i(f"s_mov_b32 s{sD+3}, 0x20000")
    P.i(f"s_lshl_b32 s{sT}, s{sNS}, 7"); P.i(f"s_lshl_b32 s{sT+1}, s{sWV}, 5"); P.i(f"s_add_u32 s{sT}, s{sT}, s{sT+1}")
    P.i("v_lshlrev_b32 v43, 3, v2"); P.i(f"v_add_u32 v43, s{sT}, v43")
    for k in range(3): P.vm(('PAR',), f"global_load_dwordx2 a[{196+2*k}:{197+2*k}], v43, s[{sP+4+2*k}:{sP+5+2*k}]")
    for k in range(1, RING): P.i(f"s_add_u32 s{sM0+k}, s{sM0}, {4096*k}")
    P.i(f"s_lshl_b32 s{sT}, s{sWV}, 2"); P.i(f"v_add_u32 v41, s{sT}, v2")
    P.i("v_mov_b32 v49, v2")
    for q0 in range(3):
        P.i(f"v_add_u32 v42, {q0}, v40"); P.i("v_and_b32 v43, 7, v42"); P.i("v_lshlrev_b32 v43, 1, v43"); P.i("v_xor_b32 v43, v43, v41")
        P.i("v_lshlrev_b32 v43, 4, v43"); P.i(f"v_lshl_add_u32 v{vAA+q0}, v42, 11, v43")
    P.i("v_bfe_u32 v42, v0, 2, 2"); P.i("v_lshl_add_u32 v43, v49, 3, v42"); P.i("v_lshlrev_b32 v43, 7, v43")
    P.i("v_and_b32 v48, 3, v0"); P.i("v_lshl_add_u32 v43, v48, 3, v43"); P.i(f"v_add_u32 v43, s{sM0}, v43")
    P.i("v_lshrrev_b32 v42, 1, v42"); P.i("v_and_b32 v48, 1, v49"); P.i("v_lshl_or_b32 v42, v48, 1, v42"); P.i(f"v_xor_b32 v42, s{sWV}, v42")
    for nb in range(4):
        P.i(f"v_xor_b32 v48, {nb}, v42"); P.i(f"v_lshl_add_u32 v{vTA+nb}, v48, 5, v43")
    for sg in range(1, RING):
        for nb in range(4): P.i(f"v_add_u32 v{vTA+4*sg+nb}, {4096*sg}, v{vTA+nb}")
    P.i(f"v_mov_b32 v{vSEL}, 0x07060302"); P.i(f"s_mov_b32 s{sMSK}, 0xffff0000")
    P.i(f"s_mov_b32 s{sCNT}, 3"); P.i(f"s_mov_b32 s{sXQ}, 0")
    P.i(f"s_cmp_eq_u32 s{sTILE}, 15"); P.i(f"s_cselect_b32 s{sLAST}, 1, 0")
    for k in range(192): P.i(f"v_accvgpr_write_b32 a{k}, 0")
    P.need(vm=[('XD', 0)])
    stamp(21, P)
    P.i("s_barrier")
    for n in [('E',0,0), ('U',0,0), ('E',0,1), ('U',0,1), ('E',0,2), ('U',0,2), ('E',0,3), ('U',0,3), ('E',0,4)]: padd(xread(n))
    P.need(vm=[('W', 0)])
    for nb in range(4):
        for h in range(2): padd(tr(0, 0, 0, nb, h))
    P.need(vm=[('W', 1)])
    for nb in range(4):
        for h in range(2): padd(tr(1, 1, 0, nb, h))
    for g_ in range(4):
        P.need(ds=[('U', 0, g_), ('E', 0, g_+1)])
        for hf in range(2):
            for op in sjob(0, g_, hf): P.i(op())
    P.need(ds=[('H', 0, 0, 3)])
    pw(5)
    if (0, 0) not in semi:
        for nb in (0, 1):
            P.need(ds=[('H', 1, 0, nb)])
            for hf in range(2):
                for op in hsjob(0, nb, hf): P.i(op())
    P.need(ds=[('H', 1, 0, 3)] + U0.G[0].mneed)
    pw(6)
    stamp(1, P)
    if stamps: P.i(f"s_memrealtime s[{sST+24}:{sST+25}]")
    F0 = Stream()
    paths = [P.items + S0.items + S1.items + S0.items + S1.items + S0.items + F0.items + SF.items]
    resolve(paths); prune_waits(paths)
    def place(S):
        occ = [1 if (g.need['nds'] is not None or g.need['nvm'] is not None) else 0 for g in S.G]
        for i, g in enumerate(S.G): occ[i] += len(g.scal)
        dbl = 0
        for req in sorted(S.sreq, key=lambda r: r[1]-r[0]):
            lo, hi, txts = req[0], req[1], req[2]
            strict = len(req) > 3 and req[3] != 'early' and req[3] >= 0
            if strict: lo += 1
            for tx in txts:
                rng = list(range(lo, hi+1)) if (len(req) > 3 and req[3] == 'early') else list(range(hi, lo-1, -1))
                assert rng, (lo, hi, tx)
                best = min(rng, key=lambda x: occ[x])
                if occ[best]: dbl += 1
                S.G[best].scal.append(tx); occ[best] += 1
        for g in S.G: g.slot['s'] = "\n".join(g.scal) if g.scal else None
        return dbl
    dbl = [place(s) for s in (U0, U1, FN)]
    nw = [sum(1 for g in s.G if g.need['nds'] is not None or g.need['nvm'] is not None) for s in (U0, U1, FN)]
    print("   double scalars", dbl, "waits", nw)
    def emit2(St):
        St.items = [it for it in St.items if not (it['k'] == 'i' and it['s'] is None)]
        emit(St.items, L)
    emit2(P)
    A(".p2align 6"); A("L_loop:")
    emit2(S0)
    A(f"s_cmp_eq_u32 s{sCNT}, 0"); A("s_cbranch_scc1 L_final")
    emit2(S1)
    A(f"s_mov_b32 s{sT}, s{sM0}")
    for sg in range(RING-1): A(f"s_mov_b32 s{sM0+sg}, s{sM0+sg+1}")
    A(f"s_mov_b32 s{sM0+RING-1}, s{sT}")
    A(f"s_add_u32 s{sWC}, s{sWC}, 131072")
    if stamps:
        A(f"s_mov_b64 s[{sST+4}:{sST+5}], s[{sST+6}:{sST+7}]"); A(f"s_mov_b64 s[{sST+6}:{sST+7}], s[{sST+8}:{sST+9}]"); stamp(4)
    A("s_branch L_loop")
    A(".p2align 6"); A("L_final:")
    emit2(F0); emit2(SF)
    stamp(5)
    if stamps: A(f"s_memrealtime s[{sST+26}:{sST+27}]")
    NGF = len(FN.G)
    A("v_lshrrev_b32 v2, 4, v0"); A(f"s_lshl_b32 s{sT}, s{sNS}, 7"); A(f"s_lshl_b32 s{sT+1}, s{sWV}, 5"); A(f"s_add_u32 s{sT}, s{sT}, s{sT+1}")
    A(f"v_lshlrev_b32 v3, 3, v2"); A(f"v_add_u32 v3, s{sT}, v3")
    for k in range(6): A(f"v_accvgpr_read_b32 v{vPAR+k}, a{196+k}")
    A(f"buffer_load_dword v{vCNT}, v{vCA}, s[{sD}:{sD+3}], 0 offen sc1")
    cnt = 13
    for lw, it in FN.tailw:
        need = 8 - ((NGF-1-lw) + cnt)
        if need > 0: A(f"s_nop {need-1}"); cnt += need
        A(it[2]); cnt += 1
    A("v_lshlrev_b32 v1, 4, v0")
    vRA = 20
    for nb in range(1, 4):
        A(f"s_xor_b32 s{sT}, s{sWV}, {nb}"); A(f"s_mul_i32 s{sT+1}, s{sT}, {RB}"); A(f"s_add_u32 s{sT+1}, s{sT+1}, {WBASE}"); A(f"s_lshl_b32 s{sT}, s{sT}, 13")
        A(f"v_add_u32 v{vRA+2*(nb-1)}, s{sT+1}, v1"); A(f"v_add_u32 v{vRA+2*(nb-1)+1}, s{sT}, v1")
    vOW = 208
    def own(prod, f): return vOW + (PROD[prod]*4 + f)*4
    for prod in ('Q1', 'Q2', 'S'):
        for f in range(4):
            for i in range(4): A(f"v_accvgpr_read_b32 v{own(prod,f)+i}, a{accr(prod,f,0)+i}")
    A("v_and_b32 v1, 15, v0")
    A(f"v_cmp_gt_u32 s[{sMKA}:{sMKA+1}], 15, v1")
    A(f"s_cmp_lg_u32 s{sLAST}, 0")
    A(f"s_mov_b32 s{sINV}, 0x3c042108"); A(f"s_cmov_b32 s{sINV}, 0x3c03126f")
    A(f"s_cselect_b64 s[{sMK4}:{sMK4+1}], -1, s[{sMKA}:{sMKA+1}]")
    A("s_waitcnt lgkmcnt(0)"); A("s_barrier")
    vR = 28
    rorder = [(prod, f) for f in range(4) for prod in ('Q1', 'Q2', 'S')]
    rreg = {}
    for i, (prod, f) in enumerate(rorder):
        for nb in range(1, 4):
            d = vR + (i*3 + nb-1)*4; rreg[(prod, f, nb)] = d
            a, o = redloc(redidx(prod, f, nb))
            if a == 2: a = 1; o += XS
            A(f"ds_read_b128 v[{d}:{d+3}], v{vRA+2*(nb-1)+a} offset:{o}")
    stamp(6)
    vPUBA = 172; vPOLA = 173; vOA = 174
    A(f"v_lshlrev_b32 v{vPUBA}, 5, v2"); A(f"s_lshl_b32 s{sT}, s{sWV}, 7"); A(f"v_add_u32 v{vPUBA}, s{sT}, v{vPUBA}")
    A(f"v_lshl_add_u32 v{vPOLA}, v1, 9, v{vPUBA}")
    A(f"s_lshl_b32 s{sT}, s{sTILE}, 9"); A(f"v_lshl_add_u32 v{vPUBA}, v1, 4, v{vPUBA}"); A(f"v_add_u32 v{vPUBA}, s{sT}, v{vPUBA}")
    A(f"s_mul_i32 s{sT}, s{sTILE}, {TS*1024}"); A(f"v_lshl_add_u32 v{vOA}, v1, 13, v3"); A(f"v_add_u32 v{vOA}, s{sT}, v{vOA}"); A(f"v_add_u32 v{vOA+1}, 4096, v{vOA}")
    A(f"s_mul_i32 s{sT}, s{sB}, {1985*1024}"); A(f"s_add_u32 s{sO}, s{sP+10}, s{sT}"); A(f"s_addc_u32 s{sO+1}, s{sP+11}, 0")
    A(f"s_mov_b32 s{sO+2}, {1985*1024}"); A(f"s_mov_b32 s{sO+3}, 0x20000")
    def pk(op, d, a, b, c=None, mod=""):
        s = f"v_pk_{op}_f32 v[{d}:{d+1}], v[{a}:{a+1}], v[{b}:{b+1}]"
        if c is not None: s += f", v[{c}:{c+1}]"
        A(s + mod)
    NEG = " neg_lo:[0,1] neg_hi:[0,1]"
    for i, (prod, f) in enumerate(rorder):
        A(f"s_waitcnt lgkmcnt({min(15, (11-i)*3)})")
        o = own(prod, f); d = rreg[(prod, f, 1)]
        pk('add', d, d, d+4); pk('add', d+2, d+2, d+6); pk('add', o, o, d+8); pk('add', o+2, o+2, d+10); pk('add', o, o, d); pk('add', o+2, o+2, d+2)
    vV = 176
    for i in range(4): A(f"v_mov_b32_dpp v{28+i}, v{own('Q2',0)+i} row_shl:1 row_mask:0xf bank_mask:0xf bound_ctrl:1")
    for f in range(4):
        for h in (0, 2):
            pk('add', vV + 8*f + h, own('Q2', f)+h, own('Q1', f)+h)
            pk('add', vV + 8*f + 4 + h, own('S', f)+h, own('Q1', f)+h, mod=NEG)
        for h in (0, 2):
            pk('add', vV + 8*f + 4 + h, vV + 8*f + 4 + h, (own('Q2', f+1) if f < 3 else 28)+h, mod=NEG)
    vS = 32; vM = 36; vQ = 40; vPUB = 44; vG = 48; vU = 56; vAc = 60; vCc = 64; vK = 68; vN = 74; vZ = 76; vBI = 128; vGA = 132; vBE = 136
    def dppred(b):
        for sh in (8, 4, 2, 1):
            for i in range(4): A(f"v_add_f32_dpp v{b+i}, v{b+i}, v{b+i} row_ror:{sh} row_mask:0xf bank_mask:0xf")
    def setexec(j):
        if j == 4: A(f"s_mov_b64 exec, s[{sMK4}:{sMK4+1}]")
        if j == 5: A(f"s_mov_b64 exec, s[{sMKA}:{sMKA+1}]")
    pk('add', vS, vV, vV+4); pk('add', vS+2, vV+2, vV+6)
    for j in range(2, 8):
        setexec(j); pk('add', vS, vS, vV+4*j); pk('add', vS+2, vS+2, vV+4*j+2)
    A("s_mov_b64 exec, -1")
    for k, dst in ((0, vBI), (1, vGA), (2, vBE)):
        A(f"v_lshlrev_b32 v{dst}, 16, v{vPAR+2*k}"); A(f"v_and_b32 v{dst+1}, 0xffff0000, v{vPAR+2*k}")
        A(f"v_lshlrev_b32 v{dst+2}, 16, v{vPAR+2*k+1}"); A(f"v_and_b32 v{dst+3}, 0xffff0000, v{vPAR+2*k+1}")
    dppred(vS)
    for i in range(4): A(f"v_mul_f32 v{vM+i}, s{sINV}, v{vS+i}")
    for j in range(8):
        setexec(j); o = vV + 4*j
        pk('add', o, o, vM, mod=NEG); pk('add', o+2, o+2, vM+2, mod=NEG)
        if j == 0: pk('mul', vQ, o, o); pk('mul', vQ+2, o+2, o+2)
        else: pk('fma', vQ, o, o, vQ); pk('fma', vQ+2, o+2, o+2, vQ+2)
    A("s_mov_b64 exec, -1")
    pk('add', vM, vM, vBI); pk('add', vM+2, vM+2, vBI+2)
    A("v_cmp_eq_u32 vcc, 1, v1")
    dppred(vQ)
    A(f"v_cndmask_b32 v{vPUB}, v{vM}, v{vM+2}, vcc"); A(f"v_cndmask_b32 v{vPUB+2}, v{vM+1}, v{vM+3}, vcc")
    A(f"v_cndmask_b32 v{vPUB+1}, v{vQ}, v{vQ+2}, vcc"); A(f"v_cndmask_b32 v{vPUB+3}, v{vQ+1}, v{vQ+3}, vcc")
    A("v_cmp_gt_u32 vcc, 2, v1")
    for i in range(4): A(f"v_min_u32 v{vPUB+i}, -2, v{vPUB+i}")
    A("s_mov_b64 exec, vcc")
    A(f"buffer_store_dwordx4 v[{vPUB}:{vPUB+3}], v{vPUBA}, s[{sS}:{sS+3}], 0 offen sc1")
    A("s_mov_b64 exec, -1")
    stamp(7)
    A(f"v_mov_b32 v{vK}, 0xc0135761"); A(f"v_mov_b32 v{vK+1}, 0xc0135761")
    A(f"v_mov_b32 v{vK+2}, 0xbdd2d3e8"); A(f"v_mov_b32 v{vK+3}, 0xbdd2d3e8")
    A(f"v_mov_b32 v{vK+4}, 1.0"); A(f"v_mov_b32 v{vK+5}, 1.0")
    A("v_cmp_eq_u32 vcc, 15, v1"); A(f"v_mov_b32 v{vN}, 0x42f80000"); A(f"v_mov_b32 v{vN+1}, 0x42fa0000")
    A(f"s_mov_b32 s{sT}, {spin}")
    A(f"v_cndmask_b32 v{vN}, v{vN}, v{vN+1}, vcc")
    A("s_waitcnt vmcnt(1)")
    A("L_cpoll:")
    A(f"v_readfirstlane_b32 s{sT+1}, v{vCNT}"); A(f"s_cmp_ge_u32 s{sT+1}, 16"); A("s_cbranch_scc1 L_poll")
    A(f"buffer_load_dword v{vCNT}, v{vCA}, s[{sD}:{sD+3}], 0 offen sc1")
    A(f"s_sub_u32 s{sT}, s{sT}, 1"); A("s_cbranch_scc1 L_pollout")
    A("s_waitcnt vmcnt(0)"); A("s_branch L_cpoll")
    A("L_poll:")
    A(f"buffer_load_dwordx4 v[{vG}:{vG+3}], v{vPOLA}, s[{sS}:{sS+3}], 0 offen sc1")
    A(f"buffer_load_dwordx4 v[{vG+4}:{vG+7}], v{vPOLA}, s[{sS}:{sS+3}], 0 offen offset:16 sc1")
    A(f"s_sub_u32 s{sT}, s{sT}, 1"); A("s_cbranch_scc1 L_pollout")
    A("s_waitcnt vmcnt(0)")
    A(f"v_max3_u32 v{vU}, v{vG}, v{vG+1}, v{vG+2}"); A(f"v_max3_u32 v{vU+1}, v{vG+3}, v{vG+4}, v{vG+5}")
    A(f"v_max3_u32 v{vU}, v{vU}, v{vG+6}, v{vG+7}"); A(f"v_max_u32 v{vU}, v{vU}, v{vU+1}")
    A(f"v_cmp_eq_u32 vcc, -1, v{vU}"); A("s_nop 1")
    A("s_cbranch_vccnz L_poll")
    A("L_pollout:")
    A("s_waitcnt vmcnt(0)")
    stamp(8)
    for i in range(4): A(f"v_mul_f32 v{vS+i}, v{vN}, v{vG+2*i}")
    A(f"s_mov_b32 s{sT}, 0x3a040ffe"); A(f"s_mov_b32 s{sT+1}, 0x3727c5ac")
    dppred(vS)
    for i in range(4): A(f"v_mul_f32 v{vS+i}, s{sT}, v{vS+i}")
    for i in range(4): A(f"v_sub_f32 v{vU+i}, v{vG+2*i}, v{vS+i}")
    for i in range(4): A(f"v_mul_f32 v{vQ+i}, v{vN}, v{vU+i}")
    for i in range(4): A(f"v_fma_f32 v{vU+i}, v{vQ+i}, v{vU+i}, v{vG+2*i+1}")
    A(f"v_mov_b32 v{vN+1}, s{sT+1}"); A("s_nop 0")
    dppred(vU)
    for i in range(4): A(f"v_fma_f32 v{vU+i}, v{vU+i}, s{sT}, v{vN+1}")
    for i in range(4): A(f"v_rsq_f32 v{vU+i}, v{vU+i}")
    for i in range(4): A(f"v_sub_f32 v{vM+i}, v{vM+i}, v{vS+i}")
    for i in range(4): A(f"v_mul_f32 v{vAc+i}, v{vU+i}, v{vGA+i}")
    for i in range(4): A(f"v_fma_f32 v{vCc+i}, v{vM+i}, v{vAc+i}, v{vBE+i}")
    for f0 in range(0, 8, 2):
        z = vZ + (f0 & 2)*12; t = z + 8; pkr = z + 16
        for h in range(4): pk('fma', z+2*h, vV+4*f0+2*h, vAc+2*(h & 1), vCc+2*(h & 1))
        for h in range(4): pk('mul', t+2*h, z+2*h, z+2*h)
        for h in range(4): pk('fma', t+2*h, t+2*h, vK+2, vK)
        for h in range(4): pk('mul', t+2*h, t+2*h, z+2*h)
        for k in range(8): A(f"v_exp_f32 v{t+k}, v{t+k}")
        for h in range(4): pk('add', t+2*h, t+2*h, vK+4)
        for k in range(8): A(f"v_rcp_f32 v{t+k}, v{t+k}")
        for h in range(4): pk('mul', z+2*h, t+2*h, z+2*h)
        for h in range(4): A(f"v_cvt_pk_bf16_f32 v{pkr+h}, v{z+2*h}, v{z+2*h+1}")
        for k in range(2):
            j = f0 + k
            if j == 4: A(f"s_mov_b64 exec, s[{sMK4}:{sMK4+1}]")
            if j >= 5: A(f"s_mov_b64 exec, s[{sMKA}:{sMKA+1}]")
            A(f"buffer_store_dwordx2 v[{pkr+2*k}:{pkr+2*k+1}], v{vOA + (j>>2)}, s[{sO}:{sO+3}], 0 offen offset:{(j&3)*1024}")
        if f0 == 4: A("s_mov_b64 exec, -1")
    if stamps:
        A("s_mov_b64 exec, -1")
        stamp(9); A("s_waitcnt vmcnt(0)"); stamp(10); A(f"s_memrealtime s[{sST+30}:{sST+31}]")
        A("s_waitcnt lgkmcnt(0)")
        A(f"s_add_u32 s{sX}, s{sP+14}, 0x8000000"); A(f"s_addc_u32 s{sX+1}, s{sP+15}, 0"); A(f"s_mov_b32 s{sX+2}, 0x100000"); A(f"s_mov_b32 s{sX+3}, 0x20000")
        A(f"s_getreg_b32 s{sST+22}, hwreg(HW_REG_XCC_ID)"); A(f"s_getreg_b32 s{sST+23}, hwreg(HW_REG_HW_ID)")
        A(f"s_lshl_b32 s{sT}, s{sIDX}, 3"); A(f"s_add_u32 s{sT}, s{sT}, s{sNS}"); A(f"s_lshl_b32 s{sT}, s{sT}, 2"); A(f"s_add_u32 s{sT}, s{sT}, s{sWV}"); A(f"s_lshl_b32 s{sT}, s{sT}, 7")
        for i in range(32): A(f"v_mov_b32 v{24+i}, s{sST+i}")
        A("v_mov_b32 v2, 0"); A("s_mov_b64 exec, 1")
        for i in range(8): A(f"buffer_store_dwordx4 v[{24+4*i}:{27+4*i}], v2, s[{sX}:{sX+3}], s{sT} offen offset:{16*i}")
        A("s_waitcnt vmcnt(0)")
    A("L_done:"); A("s_endpgm")
    A('.section .rodata,"a"'); A(".p2align 6"); A(f".amdhsa_kernel {KN}")
    A("  .amdhsa_next_free_vgpr 464"); A("  .amdhsa_next_free_sgpr 102"); A("  .amdhsa_accum_offset 256")
    A("  .amdhsa_group_segment_fixed_size 0"); A("  .amdhsa_kernarg_size 64"); A("  .amdhsa_user_sgpr_count 2")
    A("  .amdhsa_user_sgpr_kernarg_segment_ptr 1"); A("  .amdhsa_system_sgpr_workgroup_id_x 1"); A(".end_amdhsa_kernel")
    open(name + ".s", "w").write("\n".join(L) + "\n")
    build(name + ".s")
    return name

if __name__ == "__main__":
    import ast
    for a in sys.argv[1:]:
        nm, _, kw = a.partition(":")
        gen(nm, **(eval("dict(" + kw + ")") if kw else {}))
```

```python
import sys, os, re
from build import build
from gen import Stream, resolve, prune_waits, emit, KN, HDR

XS = 36864
WBASE = 2*XS
SPARE = WBASE + 65536
LDS = SPARE + 16384
TS = 248
BOX = 1 << 20

class Gap:
    def __init__(s):
        s.mfma = None; s.mneed = []; s.mem = None; s.valu = []; s.nds = []; s.nvm = []; s.scal = []; s.need = None

def gen(name, stamps=0, stampset=0, exact=0, spin=1<<18, pref=1, xpf=1, xmax=2, lat=8, mapm=0,
        bp=1, dmp=(12, 18, 24, 30), xdp=(36, 40, 44), xdk=(7, 0, 1), jx=4, pfpos=34,
        curx=((0, 10), (0, 38), (1, 10), (1, 38), (2, 10), (2, 38), (3, 10)),
        nxt=None, nS0=8, cnk=3, wdel=8, sto=(40, 46, 54, 60, 68, 74, 82, 88), bpB=8, rlead=10, vmcost=2, nsets=45, xdp7=(15, 21, 27),
        fcur=None, nodma=0, nox=0, noval=0, noxch=0):
    L = []; A = L.append
    A(HDR.rstrip("\n"))
    A(f"; @launch grid=(256,1,1) block=(256,1,1) lds={LDS}")
    A('.amdgcn_target "amdgcn-amd-amdhsa--gfx950"')
    A(".text"); A(f".globl {KN}"); A(".p2align 8"); A(f".type {KN},@function"); A(f"{KN}:")
    vAA = 1; vTA = 3; vWO = 5; vWB = 7; vVX = 9; vPF = 11; vPX = 12; vWK = 14; vT = 16; vH = 28; vXS = 76
    vRW = 5; vRR = 7; vBO = 9; vCA = 10; vONE = 11; vAT = 12; vCNT = 13
    aXS = 204; NAS = 13
    sX = 4; sW = 8; sS = 12; sO = 4; sD = 16
    sWV = 24; sNS = 25; sTILE = 26; sB = 27; sGRP = 28; sKH = 29; sM0 = 30; sKS = 31; sNH = 32; sSTEP = 33; sXD = 34
    sWC = 35; sWO = 36; sCNT = 37; sT = 38
    sXM = 41; sXM2 = 46; sMKA = 42; sMK0 = 44; sINV = 46; sIDX = 47
    sP = 48; sST = 64; sBX = 96
    sPRT = 100; sXO = 101; sXQ = 3; sPFO = 2; sPX = 0; sMSK = 1; sSEL = 20; sPFA = 21; sXB = 23
    if nxt is None:
        nxt = [(4, 10), (4, 11), (4, 13), (4, 32), (4, 33), (5, 10), (5, 11), (5, 32), (5, 33), (6, 10), (6, 11), (6, 32), (6, 33), (7, 9), (7, 10), (7, 20), (7, 21)]
    if fcur is None: fcur = [(24*i + 10) for i in range(7)]
    PROD = {'Q2': 0, 'Q1': 1, 'S': 2}
    def accr(prod, f, nb): return (PROD[prod]*16 + f*2 + nb)*4
    def acc(prod, f, nb): b = accr(prod, f, nb); return f"a[{b}:{b+3}]"
    def hreg(which, buf, nb): return vH + ((which*2 + buf)*2 + nb)*4
    def stamp(k, S=None):
        if not stamps: return
        mp = [{}, {7: None, 8: None, 20: 7, 21: 8}, {4: None, 22: 2, 23: 3, 24: 4}][stampset]
        k = mp.get(k, k)
        if k is None or k >= 20: return
        s = f"s_memtime s[{sST+2*k}:{sST+2*k+1}]"
        (S.i if S else A)(s)
    cur = {'alloc': {}}
    def Rn(n): return cur['alloc'][n]
    def R(n):
        c, b = Rn(n); assert c == 'v', n; return b
    def RR(n): c, b = Rn(n); return f"{c}[{b}:{b+3}]"
    def vr(b, n=4): return f"v[{b}:{b+n-1}]"
    def tr(slot, which, buf, nb, h):
        d = hreg(which, buf, nb) + 2*h
        return ('ds', ('H', which, buf, nb), f"ds_read_b64_tr_b16 v[{d}:{d+1}], v{vTA + nb} offset:{slot*4096 + h*512}")
    def xread(n):
        ty, p, g = n; gam = 2*g + (1 if ty[0] == 'U' else 0)
        return ('ds', n, lambda: f"ds_read_b128 {RR(n)}, v{vAA + (gam>>4)} offset:{p*XS + (gam&15)*256}")
    def wdma(P, vo, d): return ('vm', ('W', P % 16), f"buffer_load_dwordx4 v{vo+d}, s[{sW}:{sW+3}], s{sWO} offen offset:{d*1024} lds")
    def xdma(p, c): return ('vm', ('XD', p), f"buffer_load_dwordx4 v{vVX + (c >> 3)}, s[{sX}:{sX+3}], s{sXO} offen lds")
    def xm0(p, c): return f"s_add_u32 m0, s{sXM}, {p*XS + (c >> 2)*16384 + (c & 3)*1024}" if c < 8 else f"s_add_u32 m0, s{sXM2}, {p*XS + 32768}"
    def xgo(c): return ((c >> 2)*128 + (c & 3)*4)*2048 if c < 8 else 0
    tcount = [0]
    def tmp():
        i = tcount[0]; tcount[0] += 1
        return vT + 6*(i & 1), i
    def addops(a, b, o):
        T, i = tmp()
        if exact:
            return [lambda: f"v_lshlrev_b32 v{T}, 16, v{a()}", lambda: f"v_lshlrev_b32 v{T+1}, 16, v{b()}",
                    lambda: f"v_and_b32 v{T+2}, s{sMSK}, v{a()}", lambda: f"v_and_b32 v{T+3}, s{sMSK}, v{b()}",
                    lambda: f"v_add_f32 v{T}, v{T}, v{T+1}", lambda: f"v_add_f32 v{T+2}, v{T+2}, v{T+3}",
                    lambda: f"v_lshlrev_b32 v{T+4}, 16, v{a()+1}", lambda: f"v_lshlrev_b32 v{T+5}, 16, v{b()+1}",
                    lambda: f"v_cvt_pk_bf16_f32 v{o()}, v{T}, v{T+2}",
                    lambda: f"v_and_b32 v{T+1}, s{sMSK}, v{a()+1}", lambda: f"v_and_b32 v{T+3}, s{sMSK}, v{b()+1}",
                    lambda: f"v_add_f32 v{T+4}, v{T+4}, v{T+5}", lambda: f"v_add_f32 v{T+1}, v{T+1}, v{T+3}",
                    lambda: f"v_cvt_pk_bf16_f32 v{o()+1}, v{T+4}, v{T+1}"]
        ops = [lambda: f"v_lshlrev_b64 v[{T}:{T+1}], 16, v[{a()}:{a()+1}]", lambda: f"v_lshlrev_b64 v[{T+2}:{T+3}], 16, v[{b()}:{b()+1}]",
               lambda: f"v_add_f32 v{T+4}, v{a()}, v{b()}", lambda: f"v_add_f32 v{T+5}, v{a()+1}, v{b()+1}",
               lambda: f"v_add_f32 v{T}, v{T}, v{T+2}", lambda: f"v_add_f32 v{T+1}, v{T+1}, v{T+3}"]
        if i & 1: ops.append(lambda: f"v_cvt_pk_bf16_f32 v{o()}, v{T}, v{T+4}")
        else: ops.append(lambda: f"v_perm_b32 v{o()}, v{T+4}, v{T}, s{sSEL}")
        ops.append(lambda: f"v_perm_b32 v{o()+1}, v{T+5}, v{T+1}, s{sSEL}")
        return ops
    def hjob(a, b, o, half): return addops(lambda: a+2*half, lambda: b+2*half, lambda: o+2*half)
    def sjob(p, g, half): return addops(lambda: R(('U', p, g))+2*half, lambda: R(('E', p, g+1))+2*half, lambda: R(('S', p, g))+2*half)

    class Sec:
        def __init__(S, p):
            S.G = []; S.p = p; S.uses = {}; S.jobs = []; S.sreq = []; S.issue = {}; S.m0u = []; S.wou = []; S.xou = []; S.base = []
        def use(S, n, g): S.uses.setdefault(n, []).append(g)
        def put(S, gi, item):
            while S.G[gi].mem is not None: gi += 1
            S.G[gi].mem = item; return gi
        def putds(S, gi, item, reg=True):
            gi = S.put(gi, item); S.issue[item[1]] = gi
            if reg and item[1][0] != 'H': S.use(item[1], gi)
            return gi
        def job(S, ops, rdy, dl, needs=(), reads=(), writes=(), after=None):
            j = dict(ops=list(ops), rdy=rdy, dl=dl, needs=list(needs), reads=list(reads), writes=list(writes), after=after or [])
            S.jobs.append(j); return j
        def mf(S, prod, f, nb, n, hb, hn, first_n, first_h, k):
            g = Gap()
            g.mfma = (lambda: f"v_mfma_f32_16x16x32_bf16 {acc(prod,f,nb)}, {vr(hb)}, {RR(n)}, {acc(prod,f,nb)}")
            if first_n and n[0] != 'S': g.mneed.append(n)
            if first_h and hn is not None: g.mneed.append(hn)
            g.prod = prod; g.f = f; g.nb = nb; g.k = k; g.hb = hb
            S.use(n, len(S.G)); S.G.append(g)
        def macro(S, K, b, P, tiles, dma, vo, wotxt, barpos):
            G = S.G; buf = (K+1) & 1
            pb = K & 1
            G[b+barpos-1].nds += [('H', 0, pb, 1), ('H', 1, pb, 1)] if not getattr(S, 'single%d' % K, 0) else [('H', 0, pb, 1)]
            if tiles and not nodma: G[b+barpos-1].nvm.append(('W', (P+1) % 16))
            G[b+barpos].scal.append("s_barrier")
            gi = b+barpos
            for slot, which in tiles:
                for nb in range(2):
                    for h in range(2): gi = S.putds(gi, tr(slot, which, buf, nb, h))
            i = 0
            for slot, txt in dma:
                if nodma: break
                gs = [S.put(b+max(dmp[i+d], barpos+1), wdma(P+4, vo, d)) for d in range(2)]; i += 2
                for x in gs: S.m0u.append((x, f"s_add_u32 m0, s{sM0}, {slot*4096}"))
                S.wou.append((gs[0], gs[1], txt))
        def schedule(S):
            G = S.G; NG = len(G)
            cap = [2 - ((vmcost if g.mem[0] == 'vm' else 1) if g.mem else 0) for g in G]
            pend = sorted(S.jobs, key=lambda j: (j['dl'], j['rdy']))
            for j in pend: j['pos'] = 0; j['done'] = None
            c = None
            for gi in range(NG):
                n = cap[gi]
                for d in sorted(set(j['dl'] for j in pend)):
                    dem = sum(len(j['ops']) - j['pos'] for j in pend if j['dl'] <= d)
                    sup = sum(cap[x] + xmax for x in range(gi+1, d+1))
                    n = max(n, dem - sup)
                while n > 0:
                    if c is None:
                        cs = [j for j in pend if j['rdy'] <= gi and all(a['done'] is not None for a in j['after'])]
                        if not cs: break
                        c = cs[0]; c['start'] = gi
                        G[gi].nds += c['needs']
                    G[gi].valu.append(c['ops'][c['pos']]); c['pos'] += 1; n -= 1
                    if c['pos'] == len(c['ops']):
                        assert gi <= c['dl'], ("deadline miss", S.p, gi, c['dl'], c['ops'][0]())
                        for x in c['reads']: S.use(x, gi)
                        for x in c['writes']: S.use(x, c['start']); S.use(x, gi)
                        c['done'] = gi; pend.remove(c); c = None
            assert not pend, ("unscheduled", len(pend))
            S.idle = sum(max(0, cap[i] - len(G[i].valu)) for i in range(NG)); S.extra = sum(max(0, len(G[i].valu) - cap[i]) for i in range(NG))
            S.m0u.sort(); S.wou.sort(); S.xou.sort()
            prev = -1; ptxt = None
            for gi, txt in S.m0u:
                if txt != ptxt: S.sreq.append((prev if prev >= 0 else 0, gi-1, [txt], prev))
                prev = gi; ptxt = txt
            for lst in (S.wou, S.xou):
                pw_ = -1
                for first, last, txt in lst:
                    assert pw_ < first
                    S.sreq.append((pw_ if pw_ >= 0 else 0, first-1, [txt], pw_)); pw_ = last

    NXT = [('E', 0)] + [x for g in range(8) for x in (('U', g), ('E', g+1))]
    def section(p):
        S = Sec(p); G = S.G; q = 1-p
        for k in range(8):
            S.base.append(len(G))
            single = (p == 1 and k == 7)
            prods = [('Q2', 0, 'E')] + ([('S', 0, 'S')] if single else [('Q1', 1, 'U'), ('S', 2, 'S')])
            for prod, which, ty in prods:
                for m in range(16):
                    f = m >> 1; nb = (m & 1) ^ (f & 1)
                    S.mf(prod, f, nb, (ty, p, k+f), hreg(which, k & 1, nb), ('H', which, k & 1, nb) if which < 2 else None, (m & 1) == 0, f == 0, k)
        NG = len(G); S.base.append(NG); base = S.base
        if p == 1: S.single7 = 1
        for k in range(8):
            b = base[k]; P = 8*p + k
            P1 = (P+1) % 16; P4 = (P+4) % 16
            tiles = [((2*P1) % 8, 0)] + ([((2*P1+1) % 8, 1)] if P1 != 15 else [])
            dma = []
            for a in range(2 if P4 != 15 else 1):
                p4, k4 = P4 >> 3, P4 & 7
                off = (2*(2*k4+a) + p4)*524288 + (65536 if P+4 >= 16 else 0)
                if p == 0 and k >= 4 and not (k == 4 and a == 0): txt = f"s_add_u32 s{sWO}, s{sWO}, s{sSTEP}"
                else: txt = f"s_add_u32 s{sWO}, s{sWC}, {off}"
                dma.append(((2*P4+a) % 8, txt))
            S.macro(k, b, P, tiles, dma, vWB if (p == 0 and k >= 4) else vWO, None, bp)
            if k == 7: G[b+bp-1].nds += [('U', p, 14), ('E', p, 15)]
            if k == jx and not nox: G[b+bp-1].nvm.append(('XD', q))
            for i, xk in enumerate(xdk):
                if xk != k or nox: continue
                tgt = p if k > jx else q
                for c in range(3*i, 3*i+3):
                    gp = xdp[c - 3*i] if base[k+1]-b >= 48 else xdp7[c-3*i]
                    gi = S.put(b+gp, xdma(tgt, c)); S.m0u.append((gi, xm0(tgt, c)))
                    if k > jx: txt = f"s_add_u32 s{sXO}, s{sXB}, {xgo(c)}" if p == 0 else f"s_add_u32 s{sXO}, s{sXQ}, {1024 + xgo(c)}"
                    else: txt = f"s_add_u32 s{sXO}, s{sXQ}, {(1024 if p == 0 else 128) + xgo(c)}"
                    S.xou.append((gi, gi, txt))
            if k == 0 and pref:
                gi = S.put(b+pfpos, ('vm', ('PF',), f"buffer_load_dword a{192+q}, v{vPF}, s[{sW}:{sW+3}], s{sPFO} offen"))
                S.sreq.append((0, gi-1, [f"s_add_u32 s{sPFO}, s{sWC}, s{sPFA+q}"]))
            if k == 0 and xpf:
                gi = S.put(b+pfpos, ('vm', ('PX',), f"buffer_load_dword a{194+q}, v{vPX}, s[{sX}:{sX+3}], s{sPX} offen"))
                S.sreq.append((0, gi-1, [f"s_add_u32 s{sPX}, s{sXQ}, {128 + 1024*p}"]))
        for i, (k, gp) in enumerate(curx):
            gi = S.putds(base[k]+gp, xread(('U', p, 8+i))); S.putds(gi, xread(('E', p, 9+i)))
        for (ty, g), (k, gp) in zip(NXT, nxt):
            assert (k, gp) > (jx, bp)
            S.putds(base[k]+gp, xread((ty, q, g)))
        def fu(pred): return min(i for i, g in enumerate(G) if pred(g))
        for k in range(8):
            if p == 1 and k == 7: continue
            for nb in range(2):
                hs = hreg(2, k & 1, nb)
                dl = fu(lambda g: g.k == k and g.hb == hs) - 2
                rdy = 0 if k == 0 else S.issue_h[(k, nb)] if False else (0 if k == 0 else base[k-1] + bp + 5 + 2*nb + lat)
                for hf in range(2): S.job(hjob(hreg(0, k & 1, nb), hreg(1, k & 1, nb), hs, hf), rdy, dl, [('H', 0, k & 1, nb), ('H', 1, k & 1, nb)])
        def sj(pp, g, rdy, dl):
            for hf in range(2): S.job(sjob(pp, g, hf), rdy, dl, [('U', pp, g), ('E', pp, g+1)], reads=[('U', pp, g), ('E', pp, g+1)], writes=[('S', pp, g)])
        for g in range(nS0, 8): sj(p, g, 0, min(S.uses[('S', p, g)]) - 2)
        for g in range(8, 15): sj(p, g, max(S.issue[('U', p, g)], S.issue[('E', p, g+1)]) + lat, min(S.uses[('S', p, g)]) - 2)
        for g in range(nS0): sj(q, g, max(S.issue[('U', q, g)], S.issue[('E', q, g+1)]) + lat, NG-1)
        S.schedule()
        return S

    XQ = [('Q1', i) for i in range(4)] + [('Q2', i) for i in range(5)] + [('S', i) for i in range(4)]
    def xf(ks, i): return (4*ks + i) & 7
    def xloc(idx): return (0, idx*1024) if idx < 9 else (1, (idx-9)*1024)
    def xw(prod, i, nb):
        a, o = xloc(XQ.index((prod, i)))
        return ('ds', ('XW',), {ks: f"ds_write_b128 v{vRW+a}, {acc(prod, xf(1-ks, i), nb)} offset:{o}" for ks in (0, 1)})
    def xr(prod, i):
        a, o = xloc(XQ.index((prod, i))); n = ('R', prod, i)
        return ('ds', n, lambda: f"ds_read_b128 {RR(n)}, v{vRR+a} offset:{o}")
    def final():
        S = Sec(1); G = S.G; hb_ = []
        for ph in range(2):
            nb = 1 - ph
            for k in range(8):
                K = ph*4 + (k >> 1); sub = k & 1
                if sub == 0: S.base.append(len(G))
                hb_.append(len(G))
                H0 = hreg(sub, K & 1, 0); H1 = hreg(sub, K & 1, 1); Hs = hreg(2, K & 1, sub)
                t0 = ('H', sub, K & 1, 0); t1 = ('H', sub, K & 1, 1)
                sfx = '2' if ph else ''
                prods = [('Q2', H0, t0, 'E'+sfx)] + ([('S', H0, t0, 'S')] if k == 7 else [('Q1', H1, t1, 'U'+sfx), ('S', Hs, None, 'S')])
                for prod, hb, hn, ty in prods:
                    for f in range(8): S.mf(prod, f, nb, (ty, 1, k+f), hb, hn, True, f == 0, ph*8+k)
        NG = len(G); S.base.append(NG); base = S.base; hb_.append(NG); B0 = hb_[8]
        S.B0 = B0
        for K in range(8):
            b = base[K]; P = 8+K
            tiles = [((2*K+2) % 8, 0), ((2*K+3) % 8, 1)] if K < 7 else []
            dma = []
            if K < 4:
                for a in range(2): dma.append(((2*K+a) % 8, f"s_add_u32 s{sWO}, s{sWC}, {(4*(2*K+a)+1)*524288}"))
            S.macro(K, b, P, tiles, dma, vWK, None, bpB if K == 4 else bp)
            if K == 3: G[b+bp-1].nvm.append(('XD', 0)) if not nox else None
        S.put(base[cnk]+34, ('vm', ('CN',), f"buffer_load_dword v{vCNT}, v{vCA}, s[{sD}:{sD+3}], 0 offen sc1"))
        for i in range(7):
            gi = S.putds(fcur[i], xread(('U', 1, 8+i))); S.putds(gi, xread(('E', 1, 9+i)))
        lastw = {}
        for i, g in enumerate(G): lastw[(g.prod, g.f, g.nb)] = i
        def fin(prod, nb): return max(lastw[(prod, f, nb)] for f in range(8))
        split = NG
        for prod, i in XQ:
            gi = S.put(max(lastw[(prod, xf(0, i), 1)], lastw[(prod, xf(1, i), 1)]) + 5, xw(prod, i, 1))
            split = min(split, gi); S.split = split
            assert gi < base[4] + bpB - 1, (prod, i, gi - base[4])
        G[base[4]+bpB-1].nds.append(('XW',))
        for ty in ('E2', 'U2'):
            for g in range(15):
                n = (ty, 1, g)
                if n not in S.uses: continue
                gi = min(S.uses[n]) - rlead
                while G[gi].mem is not None: gi -= 1
                S.putds(gi, xread(n))
        S.sreq.append((0, 6, [f"s_mul_i32 s{sT}, s{sWV}, 9216"])); S.sreq.append((0, 6, [f"s_lshl_b32 s{sT+1}, s{sWV}, 12"])); S.sreq.append((0, 6, [f"s_lshl_b32 s{sT+2}, s{sGRP}, 4"]))
        pre = S.job([lambda: f"v_lshlrev_b32 v{vBO}, 4, v0", lambda: f"v_mov_b32 v{vCA}, s{sT+2}", lambda: f"v_add_u32 v{vRW}, s{sT}, v{vBO}",
                     lambda: f"v_add_u32 v{vRW+1}, s{sT+1}, v{vBO}",
                     lambda: f"v_xor_b32 v{vRR+1}, 8192, v{vRW+1}", lambda: f"v_add_u32 v{vRW+1}, {SPARE}, v{vRW+1}", lambda: f"v_add_u32 v{vRR+1}, {SPARE}, v{vRR+1}"], 10, 30)
        S.sreq.append((31, 40, [f"s_xor_b32 s{sT}, s{sWV}, 2"])); S.sreq.append((41, 50, [f"s_mul_i32 s{sT}, s{sT}, 9216"])); S.sreq.append((31, 50, [f"s_lshl_b32 s{sT+1}, s{sWV}, 13"]))
        S.sreq.append((31, 50, [f"s_mov_b32 s{sT+2}, 4096"]))
        S.job([lambda: f"v_add_u32 v{vRR}, s{sT}, v{vBO}", lambda: f"v_add_u32 v{vBO}, s{sT+1}, v{vBO}"], 54, 100)
        def fu(pred): return min(i for i, g in enumerate(G) if pred(g))
        for hp in range(16):
            if hp & 7 == 7: continue
            K = hp >> 1; sub = hp & 1
            hs = hreg(2, K & 1, sub)
            dl = fu(lambda g: g.k == hp and g.hb == hs) - 2
            rdy = 0 if K == 0 else base[K-1] + (bpB if K-1 == 4 else bp) + 3 + 4*sub + lat
            if K > 0: rdy = max(rdy, max(i for i, g in enumerate(G) if g.k == hp-4 and g.hb == hs) + 1) if hp >= 4 and any(g.k == hp-4 and g.hb == hs for g in G) else rdy
            for hf in range(2): S.job(hjob(hreg(sub, K & 1, 0), hreg(sub, K & 1, 1), hs, hf), rdy, dl, [('H', sub, K & 1, 0), ('H', sub, K & 1, 1)])
        def sj(g, rdy, dl):
            for hf in range(2): S.job(sjob(1, g, hf), rdy, dl, [('U', 1, g), ('E', 1, g+1)], reads=[('U', 1, g), ('E', 1, g+1)], writes=[('S', 1, g)])
        for g in range(nS0, 8): sj(g, 0, min(S.uses[('S', 1, g)]) - 2)
        for g in range(8, 15): sj(g, max(S.issue[('U', 1, g)], S.issue[('E', 1, g+1)]) + lat, min(S.uses[('S', 1, g)]) - 2)
        spos = []
        for j in range(8):
            n = ('O', 'Q1' if j % 2 == 0 else 'S', j >> 1)
            gi = S.put(B0 + sto[j], ('vm', ('ST',), (lambda n=n, j=j: f"buffer_store_dwordx4 {RR(n)}, v{vBO}, s[{sBX}:{sBX+3}], {'s%d' % (sT+2) if j >= 4 else '0'} offen offset:{(j&3)*1024} sc1")))
            S.use(n, gi); S.use(n, gi+1); spos.append(gi)
        def own(prod, i, nm, nb, rdy, dl):
            n = (nm, prod, i)
            return S.job([(lambda e=e: {ks: f"v_accvgpr_read_b32 v{R(n)+e}, a{accr(prod, xf(ks, i), nb)+e}" for ks in (0, 1)}) for e in range(4)], rdy, dl, writes=[n])
        dlq = {}
        for i in range(4):
            dlq[('Q1', i)] = spos[2*i] - 8; dlq[('S', i)] = spos[2*i] - 8
        for i in range(5): dlq[('Q2', i)] = spos[2*max(i-1, 0)] - 8
        order = sorted(XQ, key=lambda x: dlq[x])
        gi = base[4] + bpB
        sumj = {}
        for prod, i in order:
            o = own(prod, i, 'O', 1, max(split, fin(prod, 1) + 5), dlq[(prod, i)] - 4)
            gi = max(gi, dlq[(prod, i)] - 26)
            gi = S.putds(gi, xr(prod, i))
            n = ('O', prod, i); r = ('R', prod, i)
            ops = [(lambda e=e, n=n, r=r: f"v_add_f32 v{R(n)+e}, v{R(n)+e}, v{R(r)+e}") for e in range(4)]
            if (prod, i) == ('Q2', 4):
                ops += [(lambda e=e, n=n: {0: f"v_mov_b32 v{R(n)+e}, v{R(n)+e}", 1: f"v_mov_b32_dpp v{R(n)+e}, v{R(n)+e} row_shl:1 row_mask:0xf bank_mask:0xf bound_ctrl:1"}) for e in range(4)]
            sumj[(prod, i)] = S.job(ops, gi + lat, dlq[(prod, i)], [r], reads=[r, n], after=[o])
        for i in range(4):
            q1 = ('O', 'Q1', i); s_ = ('O', 'S', i); q2 = ('O', 'Q2', i); q2n = ('O', 'Q2', i+1)
            ops = [(lambda e=e, a=s_, b=q1: f"v_sub_f32 v{R(a)+e}, v{R(a)+e}, v{R(b)+e}") for e in range(4)]
            ops += [(lambda e=e, a=q1, b=q2: f"v_add_f32 v{R(a)+e}, v{R(a)+e}, v{R(b)+e}") for e in range(4)]
            j1 = S.job(ops, 0, spos[2*i]-1, reads=[q1, s_, q2], after=[sumj[('Q1', i)], sumj[('S', i)], sumj[('Q2', i)]])
            S.job([(lambda e=e, a=s_, b=q2n: f"v_sub_f32 v{R(a)+e}, v{R(a)+e}, v{R(b)+e}") for e in range(4)], 0, spos[2*i+1]-1, reads=[s_, q2n], after=[j1, sumj[('Q2', i+1)]])
        S.tailw = []; S.tailo = []
        for prod, i in XQ:
            lw = max(lastw[(prod, xf(0, i), 0)], lastw[(prod, xf(1, i), 0)])
            gi = lw + wdel
            while gi < NG and G[gi].mem is not None: gi += 1
            if gi < NG: G[gi].mem = xw(prod, i, 0)
            else: S.tailw.append((lw, xw(prod, i, 0)))
            if prod == 'Q1': own(prod, i, 'K', 0, fin(prod, 0) + 5, NG-1); S.use(('K', prod, i), NG)
            else: S.tailo.append((prod, i))
        S.schedule()
        return S

    U0 = section(0); U1 = section(1); FN = final()
    N0 = len(U0.G); N1 = len(U1.G)
    def entry(p): return [('E', p, g) for g in range(9)] + [('U', p, g) for g in range(8)] + [('S', p, g) for g in range(nS0)]
    entry0 = entry(0)
    iv = {}
    for n, u in U0.uses.items(): iv.setdefault(n, []).extend(u)
    for n, u in U1.uses.items(): iv.setdefault(n, []).extend([x + N0 for x in u])
    segs = {}
    for n, u in iv.items():
        if n in entry0:
            lo = [x for x in u if x < N0]; hi = [x for x in u if x >= N0]
            segs[n] = [(0, max(lo)), (min(hi), N0+N1)]
        else: segs[n] = [(min(u), max(u))]
    def allocate(segs, order, fixed, aok):
        import random
        rnd = random.Random(1)
        names = list(segs)
        adj = {n: set() for n in names}
        for i, n in enumerate(names):
            for m in names[i+1:]:
                if any(not (b_ < x or a > y) for a, b_ in segs[n] for x, y in segs[m]): adj[n].add(m); adj[m].add(n)
        VS = [('v', vXS+4*i) for i in range(nsets)]; AS = [('a', aXS+4*i) for i in range(NAS)]
        for att in range(3000):
            al = {}; ok = True
            av = {n: set(VS) | (set(AS) if aok(n) else set()) for n in names}
            def assign(n, r):
                al[n] = r
                for m in adj[n]: av[m].discard(r)
            for n, r in fixed.items(): assign(n, r)
            todo = set(n for n in names if n not in al)
            noise = {n: rnd.random()*(3 if att else 0) for n in names}
            while todo:
                n = min(todo, key=lambda n: (len(av[n]) + noise[n], -len(adj[n]), str(n)))
                c = [r for r in av[n] if r[0] == 'a'] or list(av[n])
                if not c: ok = False; break
                nb_ = [m for m in adj[n] if m in todo]
                r = min((sum(1 for m in nb_ if r in av[m]) + rnd.random()*(1.5 if att else 0), r) for r in sorted(c))[1]
                assign(n, r); todo.remove(n)
            if ok: return al
        raise RuntimeError(("alloc fail", n))
    def press(sg, N):
        pr = [0]*(N+1)
        for n, l in sg.items():
            for a, b_ in l:
                for x in range(a, min(b_, N)+1): pr[x] += 1
        return pr
    pr = press(segs, N0+N1); print("pressure", max(pr), [max(pr[i:i+16]) for i in range(0, N0+N1, 16)])
    order = sorted(segs, key=lambda n: (0 if n in entry0 else 1, segs[n][-1][0] if n in entry0 else segs[n][0][0]))
    AL = allocate(segs, order, {}, lambda n: n[0] == 'E' and n[2] == 0)
    fsegs = {n: [(0 if n in entry(1) else min(u), max(u))] for n, u in FN.uses.items()}
    AF = allocate(fsegs, sorted(fsegs, key=lambda n: fsegs[n][0][0]), {n: AL[n] for n in entry(1)}, lambda n: n[0] in ('E2', 'U2'))
    nv = lambda al: max((b - vXS)//4 + 1 for c, b in al.values() if c == 'v')
    print(name, "sets", nv(AL), nv(AF), "idle/extra", [(s.idle, s.extra) for s in (U0, U1, FN)])
    VALRE = r'v_(lshlrev_b64|add_f32|perm|cvt_pk|and_b32|lshlrev_b32 v\d+, 16)'
    def lin(S, nextneeds, al):
        cur['alloc'] = al
        St = Stream()
        for i, g in enumerate(S.G):
            if i == getattr(S, 'split', -1): St.items.append(dict(k='i', s='@split'))
            St.i(g.mfma())
            nd = list(g.nds) + (S.G[i+1].mneed if i+1 < len(S.G) else nextneeds)
            St.need(ds=nd, vm=g.nvm); g.need = St.items[-1]
            g.slot = dict(k='i', s=None); St.items.append(g.slot)
            if g.mem:
                kind, tag, txt = g.mem
                St.items.append(dict(k=kind, tag=tag, s=(txt() if callable(txt) else txt)))
            for v in g.valu:
                t = v()
                if noval and isinstance(t, str) and re.match(VALRE, t): continue
                St.i(t)
        return St
    S0 = lin(U0, U1.G[0].mneed + FN.G[0].mneed, AL); S1 = lin(U1, U0.G[0].mneed, AL); SF = lin(FN, [], AF)
    cur['alloc'] = AL
    U0.sreq.append((U0.base[2], U0.base[5], [f"s_add_u32 s{sXB}, s{sXQ}, s{sXD}"]))
    U1.sreq.append((U1.base[2]+4, U1.base[5], [f"s_add_u32 s{sXQ}, s{sXQ}, 128"]))
    U1.sreq.append((U1.base[2], U1.base[5], [f"s_sub_u32 s{sCNT}, s{sCNT}, 1"]))

    A("s_cmp_ge_u32 s2, 256"); A("s_cbranch_scc1 L_done")
    A(f"s_load_dwordx16 s[{sP}:{sP+15}], s[0:1], 0")
    if stamps: A(f"s_memtime s[{sST}:{sST+1}]"); A(f"s_memrealtime s[{sST+28}:{sST+29}]")
    A("v_lshrrev_b32 v1, 6, v0"); A("v_and_b32 v0, 63, v0")
    if mapm == 0:
        A(f"s_and_b32 s{sNS}, s2, 7"); A(f"s_bfe_u32 s{sKH}, s2, 0x10003"); A(f"s_xor_b32 s{sPRT}, s2, 8")
    else:
        A(f"s_and_b32 s{sKH}, s2, 1"); A(f"s_bfe_u32 s{sNS}, s2, 0x10003"); A(f"s_and_b32 s{sT}, s2, 6"); A(f"s_or_b32 s{sNS}, s{sNS}, s{sT}"); A(f"s_xor_b32 s{sPRT}, s2, 1")
    A(f"s_lshr_b32 s{sIDX}, s2, 4")
    A(f"v_readfirstlane_b32 s{sWV}, v1")
    A(f"s_and_b32 s{sTILE}, s{sIDX}, 7"); A(f"s_lshr_b32 s{sB}, s{sIDX}, 3")
    A(f"s_mul_i32 s{sT}, s{sB}, 4000"); A(f"s_mul_i32 s{sT+1}, s{sTILE}, {2*TS}"); A(f"s_add_u32 s{sT}, s{sT}, s{sT+1}")
    A(f"s_lshl_b32 s{sT}, s{sT}, 1"); A(f"s_add_u32 s{sT}, s{sT}, s{sKH}"); A(f"s_lshl_b32 s{sXD}, s{sT}, 9")
    A(f"s_lshl_b32 s{sT+1}, s{sWV}, 16"); A(f"s_add_u32 s{sT}, s{sXD}, s{sT+1}")
    A("v_lshrrev_b32 v40, 4, v0"); A("v_bfe_u32 v41, v0, 3, 1"); A("v_lshl_add_u32 v42, v41, 4, v40"); A("v_lshlrev_b32 v42, 11, v42"); A(f"v_add_u32 v42, s{sT}, v42")
    A("v_and_b32 v43, 7, v0"); A(f"s_lshl_b32 s{sT+1}, s{sWV}, 1"); A(f"v_xor_b32 v44, s{sT+1}, v43"); A(f"v_lshl_add_u32 v{vVX}, v44, 4, v42")
    A(f"s_lshl_b32 s{sT+1}, s{sWV}, 13"); A(f"s_add_u32 s{sT}, s{sXD}, s{sT+1}"); A(f"s_add_u32 s{sT}, s{sT}, {256*2048}")
    A("v_lshlrev_b32 v42, 11, v40"); A("v_lshl_add_u32 v42, v43, 4, v42"); A("v_lshl_add_u32 v42, v41, 30, v42"); A(f"v_add_u32 v{vVX+1}, s{sT}, v42")
    A(f"s_lshl_b32 s{sXM}, s{sWV}, 12"); A(f"s_lshl_b32 s{sXM2}, s{sWV}, 10")
    A(f"s_mov_b32 s{sX+2}, 8192000"); A(f"s_mov_b32 s{sX+3}, 0x20000")
    A(f"s_mov_b32 s{sW+2}, 16252928"); A(f"s_mov_b32 s{sW+3}, 0x20000")
    A(f"s_lshr_b32 s{sKS}, s{sWV}, 1"); A(f"s_and_b32 s{sNH}, s{sWV}, 1")
    A("v_lshrrev_b32 v44, 3, v0"); A("v_and_b32 v45, 2, v44"); A("v_xor_b32 v43, v43, v45")
    A(f"s_lshl_b32 s{sT}, s{sKH}, 18"); A(f"s_lshl_b32 s{sT+1}, s{sWV}, 14"); A(f"s_add_u32 s{sT}, s{sT}, s{sT+1}")
    A(f"s_lshl_b32 s{sT+1}, s{sNS}, 7"); A(f"s_add_u32 s{sT}, s{sT}, s{sT+1}")
    A("v_lshlrev_b32 v44, 10, v44"); A(f"v_add_u32 v44, s{sT}, v44")
    A("v_lshlrev_b32 v45, 4, v43"); A("v_xor_b32 v46, 64, v45")
    A(f"v_add_u32 v{vWO}, v44, v45"); A(f"v_add_u32 v{vWO+1}, v44, v46"); A(f"v_add_u32 v{vWO+1}, 7168, v{vWO+1}")
    A(f"s_lshl_b32 s{sT+1}, s{sKS}, 15"); A(f"s_lshl_b32 s{sT+2}, s{sNH}, 11"); A(f"s_add_u32 s{sM0}, s{sT+1}, s{sT+2}"); A(f"s_add_u32 s{sM0}, s{sM0}, {WBASE}")
    A(f"s_mov_b32 s{sWC}, 0"); A(f"s_mov_b32 s{sXO}, 0"); A(f"s_mov_b32 m0, s{sXM}")
    A("s_waitcnt lgkmcnt(0)")
    A(f"s_mov_b32 s{sX}, s{sP}"); A(f"s_mov_b32 s{sX+1}, s{sP+1}")
    A(f"s_mov_b32 s{sW}, s{sP+2}"); A(f"s_mov_b32 s{sW+1}, s{sP+3}")
    stamp(20)
    P = Stream()
    def padd(it):
        kind, tag, txt = it
        P.items.append(dict(k=kind, tag=tag, s=txt() if callable(txt) else txt))
    def pw(PP):
        for a in range(2):
            P.i(f"s_add_u32 m0, s{sM0}, {4096*(2*PP+a)}"); P.i(f"s_mov_b32 s{sWO}, {2*(2*PP+a)*524288}")
            for d in range(2): padd(wdma(PP, vWO, d))
    for c in range(9):
        padd(xdma(0, c))
        if c < 8: P.i(xm0(0, c+1)); P.i(f"s_mov_b32 s{sXO}, {xgo(c+1)}")
    pw(0)
    P.i(f"s_min_u32 s{sPFA+1}, s{sIDX}, 14"); P.i(f"s_lshl_b32 s{sPFA+1}, s{sPFA+1}, 20"); P.i(f"s_lshl_b32 s{sPFA}, s{sIDX}, 20")
    P.i("v_lshrrev_b32 v46, 2, v0"); P.i("v_lshlrev_b32 v46, 10, v46"); P.i(f"v_add_u32 v{vPF}, s{sT}, v46")
    if pref: P.vm(('PF',), f"buffer_load_dword a192, v{vPF}, s[{sW}:{sW+3}], s{sPFA} offen")
    P.i(f"s_add_u32 s{sPFA+1}, s{sPFA+1}, 524288"); P.i(f"s_add_u32 s{sPFA}, s{sPFA}, 65536")
    P.i(f"s_mul_i32 s{sT+1}, s{sWV}, 9"); P.i(f"v_add_u32 v46, s{sT+1}, v0"); P.i("v_cmp_gt_u32 vcc, 9, v0")
    P.i(f"s_mul_i32 s{sT+1}, s{sNS}, {34*2048}"); P.i(f"s_add_u32 s{sT+1}, s{sT+1}, s{sXD}")
    P.i("v_cndmask_b32 v47, 64, v46, vcc"); P.i("v_lshlrev_b32 v46, 11, v46"); P.i(f"v_add_u32 v46, s{sT+1}, v46"); P.i("v_cmp_gt_u32 vcc, 34, v47")
    P.i(f"v_mov_b32 v{vPX}, 0x40000000"); P.i(f"s_mov_b32 s{sPX}, 1024"); P.i(f"v_cndmask_b32 v{vPX}, v{vPX}, v46, vcc")
    if xpf: P.vm(('PX',), f"buffer_load_dword a194, v{vPX}, s[{sX}:{sX+3}], s{sPX} offen")
    pw(1); pw(2); pw(3)
    for i, xk in enumerate(xdk):
        if xk > jx and not nox:
            for c in range(3*i, 3*i+3):
                P.i(xm0(1, c)); P.i(f"s_mov_b32 s{sXO}, {1024 + xgo(c)}"); padd(xdma(1, c))
    P.i(f"v_mov_b32 v{vWB}, v{vWO}"); P.i(f"v_mov_b32 v{vWB+1}, v{vWO+1}")
    P.i("v_and_b32 v46, 3, v43"); P.i("v_lshl_add_u32 v46, v46, 4, v44"); P.i(f"s_lshl_b32 s{sT+1}, s{sKH}, 6"); P.i(f"v_add_u32 v46, s{sT+1}, v46")
    P.i("v_lshrrev_b32 v47, 2, v43"); P.i(f"v_xor_b32 v47, s{sKH}, v47"); P.i(f"v_lshl_add_u32 v{vWK}, v47, 20, v46")
    P.i("v_xor_b32 v47, 1, v47"); P.i(f"v_lshl_add_u32 v{vWK+1}, v47, 20, v46"); P.i(f"v_add_u32 v{vWK+1}, 7168, v{vWK+1}")
    P.i(f"s_lshl_b32 s{sGRP}, s{sB}, 3"); P.i(f"s_add_u32 s{sGRP}, s{sGRP}, s{sNS}")
    P.i(f"s_lshl_b32 s{sT}, s{sGRP}, 13"); P.i(f"s_add_u32 s{sS}, s{sP+14}, s{sT}"); P.i(f"s_addc_u32 s{sS+1}, s{sP+15}, 0")
    P.i(f"s_mov_b32 s{sS+2}, 8192"); P.i(f"s_mov_b32 s{sS+3}, 0x20000")
    P.i(f"s_lshl_b32 s{sT}, s{sTILE}, 10"); P.i(f"s_lshl_b32 s{sT+1}, s{sKS}, 9"); P.i(f"s_add_u32 s{sT}, s{sT}, s{sT+1}")
    P.i(f"s_lshl_b32 s{sT+1}, s{sKH}, 8"); P.i(f"s_add_u32 s{sT}, s{sT}, s{sT+1}"); P.i(f"s_lshl_b32 s{sT+1}, s{sNH}, 7"); P.i(f"s_add_u32 s{sT}, s{sT}, s{sT+1}")
    P.i("v_lshlrev_b32 v46, 4, v0"); P.i(f"v_add_u32 v47, s{sT}, v46")
    for i in range(4): P.i(f"v_mov_b32 v{48+i}, -1")
    P.i("s_mov_b64 exec, 0xff")
    P.vm(('CLR',), f"buffer_store_dwordx4 v[48:51], v47, s[{sS}:{sS+3}], 0 offen sc1")
    P.i("s_mov_b64 exec, -1")
    P.i(f"s_lshl_b32 s{sT}, s2, 15"); P.i(f"s_add_u32 s{sT}, s{sT}, {BOX}"); P.i(f"s_add_u32 s{sBX}, s{sP+14}, s{sT}"); P.i(f"s_addc_u32 s{sBX+1}, s{sP+15}, 0")
    P.i(f"s_mov_b32 s{sBX+2}, 32768"); P.i(f"s_mov_b32 s{sBX+3}, 0x20000")
    P.i(f"s_lshl_b32 s{sT}, s{sWV}, 13"); P.i(f"v_add_u32 v46, s{sT}, v46"); P.i(f"s_mov_b32 s{sT+1}, 4096")
    for j in range(8): P.vm(('CLR',), f"buffer_store_dwordx4 v[48:51], v46, s[{sBX}:{sBX+3}], {'s%d' % (sT+1) if j >= 4 else '0'} offen offset:{(j&3)*1024} sc1")
    P.i(f"s_mov_b32 s{sD}, s{sP+12}"); P.i(f"s_mov_b32 s{sD+1}, s{sP+13}"); P.i(f"s_mov_b32 s{sD+2}, 256"); P.i(f"s_mov_b32 s{sD+3}, 0x20000")
    def colbase(I, d):
        I(f"s_lshl_b32 s{sT}, s{sNS}, 7"); I(f"s_lshl_b32 s{sT+1}, s{sKH}, 6"); I(f"s_add_u32 s{sT}, s{sT}, s{sT+1}")
        I(f"s_lshl_b32 s{sT+1}, s{sNH}, 5"); I(f"s_add_u32 s{sT}, s{sT}, s{sT+1}")
    colbase(P.i, 0)
    P.i("v_lshlrev_b32 v47, 3, v40"); P.i(f"v_add_u32 v47, s{sT}, v47")
    for k in range(3): P.vm(('PAR',), f"global_load_dwordx2 a[{196+2*k}:{197+2*k}], v47, s[{sP+4+2*k}:{sP+5+2*k}]")
    P.i(f"s_lshl_b32 s{sT}, s{sKS}, 2"); P.i(f"v_add_u32 v41, s{sT}, v40"); P.i("v_and_b32 v42, 15, v0")
    for q0 in range(2):
        P.i(f"v_add_u32 v43, {q0}, v42"); P.i("v_lshrrev_b32 v44, 1, v43"); P.i("v_and_b32 v45, 3, v44"); P.i("v_lshlrev_b32 v45, 1, v45"); P.i("v_xor_b32 v45, v45, v41")
        P.i("v_and_b32 v43, 1, v43"); P.i("v_lshlrev_b32 v43, 7, v43"); P.i("v_lshl_add_u32 v43, v45, 4, v43"); P.i(f"v_lshl_add_u32 v{vAA+q0}, v44, 12, v43")
    P.i("v_bfe_u32 v42, v0, 2, 2"); P.i("v_lshl_add_u32 v43, v40, 3, v42"); P.i("v_lshlrev_b32 v43, 7, v43")
    P.i("v_and_b32 v44, 3, v0"); P.i("v_lshl_add_u32 v43, v44, 3, v43")
    P.i(f"s_lshl_b32 s{sT}, s{sKS}, 15"); P.i(f"s_add_u32 s{sT}, s{sT}, {WBASE}"); P.i(f"v_add_u32 v43, s{sT}, v43")
    P.i("v_lshrrev_b32 v42, 1, v42"); P.i("v_and_b32 v44, 1, v40"); P.i("v_lshl_or_b32 v42, v44, 1, v42")
    P.i(f"s_lshl_b32 s{sT}, s{sKH}, 1"); P.i(f"s_add_u32 s{sT}, s{sT}, s{sNH}"); P.i(f"v_xor_b32 v42, s{sT}, v42")
    P.i(f"v_lshl_add_u32 v{vTA}, v42, 5, v43"); P.i(f"v_xor_b32 v{vTA+1}, 64, v{vTA}")
    P.i(f"s_mov_b32 s{sSEL}, 0x07060302"); P.i(f"s_mov_b32 s{sMSK}, 0xffff0000")
    P.i(f"s_mov_b32 s{sCNT}, 3"); P.i(f"s_mov_b32 s{sXQ}, 0"); P.i(f"s_mov_b32 s{sSTEP}, 1048576"); P.i(f"s_mov_b32 s{sXD}, 128")
    for k in range(192): P.i(f"v_accvgpr_write_b32 a{k}, 0")
    P.need(vm=[('XD', 0), ('W', 0)])
    stamp(21, P)
    P.i("s_barrier")
    for ty, g in NXT: padd(xread((ty, 0, g)))
    for a in range(2):
        for nb in range(2):
            for h in range(2): padd(tr(a, a, 0, nb, h))
    for g_ in range(nS0):
        P.need(ds=[('U', 0, g_), ('E', 0, g_+1)])
        for hf in range(2):
            for op in sjob(0, g_, hf): P.i(op())
    P.need(ds=[('H', 1, 0, 1), ('E', 0, 8)] + U0.G[0].mneed)
    stamp(1, P)
    if stamps: P.i(f"s_memrealtime s[{sST+24}:{sST+25}]")
    paths = [P.items + S0.items + S1.items + S0.items + S1.items + S0.items + SF.items]
    resolve(paths); prune_waits(paths)
    def place(S):
        occ = [1 if (g.need['nds'] is not None or g.need['nvm'] is not None) else 0 for g in S.G]
        for i, g in enumerate(S.G): occ[i] += len(g.scal)
        dbl = sum(1 for o in occ if o > 1)
        for req in sorted(S.sreq, key=lambda r: r[1]-r[0]):
            lo, hi, txts = req[0], req[1], req[2]
            if len(req) > 3 and req[3] >= 0: lo += 1
            for tx in txts:
                rng = list(range(hi, lo-1, -1))
                assert rng, (lo, hi, tx)
                best = min(rng, key=lambda x: occ[x])
                if occ[best]: dbl += 1
                S.G[best].scal.append(tx); occ[best] += 1
        for g in S.G: g.slot['s'] = "\n".join(g.scal) if g.scal else None
        return dbl
    dbl = [place(s) for s in (U0, U1, FN)]
    nw = [sum(1 for g in s.G if g.need['nds'] is not None or g.need['nvm'] is not None) for s in (U0, U1, FN)]
    print("   double scalars", dbl, "waits", nw)
    def emit2(items, ks=None):
        its = []
        for it in items:
            if it['k'] != 'need':
                if it['s'] is None: continue
                if isinstance(it['s'], dict): it = dict(it); it['s'] = it['s'][ks]
            its.append(it)
        emit(its, L)
    emit2(P.items)
    A(".p2align 6"); A("L_loop:")
    emit2(S0.items)
    A(f"s_cmp_eq_u32 s{sCNT}, 0"); A("s_cbranch_scc1 L_final")
    emit2(S1.items)
    A(f"s_add_u32 s{sWC}, s{sWC}, 65536")
    if stamps:
        A(f"s_mov_b64 s[{sST+4}:{sST+5}], s[{sST+6}:{sST+7}]"); A(f"s_mov_b64 s[{sST+6}:{sST+7}], s[{sST+8}:{sST+9}]"); stamp(4)
    A(f"s_cmp_lg_u32 s{sCNT}, 0"); A("s_cbranch_scc1 L_loop")
    A(f"v_xor_b32 v{vWB}, 64, v{vWK}"); A(f"v_xor_b32 v{vWB+1}, 64, v{vWK+1}"); A(f"s_mov_b32 s{sSTEP}, 2097152"); A(f"s_mov_b32 s{sXD}, 0x40000000")
    A(f"s_lshl_b32 s{sT}, s{sWV}, 14"); A(f"s_lshl_b32 s{sT+1}, s{sGRP}, 4"); A(f"s_add_u32 s{sT}, s{sT}, s{sT+1}")
    A(f"v_lshlrev_b32 v{vCNT}, 8, v0"); A(f"v_add_u32 v{vCNT}, s{sT}, v{vCNT}"); A(f"v_mov_b32 v{vT}, 1")
    A(f"buffer_atomic_add v{vT}, v{vCNT}, s[{sD}:{sD+3}], 0 offen sc1")
    A("s_branch L_loop")
    A(".p2align 6"); A("L_final:")
    sp = [i for i, it in enumerate(SF.items) if it.get('s') == '@split'][0]
    emit2(SF.items[:sp])
    cur['alloc'] = AF
    NGF = len(FN.G)
    kq1 = [AF[('K', 'Q1', i)][1] for i in range(4)]
    freev = [b for b in range(vH, 256, 4) if b not in kq1]
    own = {('Q1', i): kq1[i] for i in range(4)}
    for n in FN.tailo: own[n] = freev.pop(0)
    rcv = {n: freev.pop(0) for n in XQ}
    inb = [freev.pop(0) for j in range(8)]
    A(f"s_cmp_eq_u32 s{sKS}, 1"); A("s_cbranch_scc1 L_ks1")
    for ks in (0, 1):
        if ks == 1: A(".p2align 6"); A("L_ks1:")
        emit2(SF.items[sp+1:], ks)
        if ks == 0 or True:
            stamp(5)
            if stamps: A(f"s_memrealtime s[{sST+26}:{sST+27}]")
        cnt = 0
        to = list(FN.tailo)
        early = [n for n in to if n[0] == 'Q2']
        for n in early:
            for e in range(4): A(f"v_accvgpr_read_b32 v{own[n]+e}, a{accr(n[0], xf(ks, n[1]), 0)+e}"); cnt += 1
        for lw, it in FN.tailw: A(it[2][ks])
        for n in to:
            if n in early: continue
            for e in range(4): A(f"v_accvgpr_read_b32 v{own[n]+e}, a{accr(n[0], xf(ks, n[1]), 0)+e}")
        if ks == 0: A("s_branch L_join")
    A("L_join:")
    A(f"s_lshl_b32 s{sT}, s{sPRT}, 15"); A(f"s_add_u32 s{sT}, s{sT}, {BOX}"); A(f"s_add_u32 s{sBX}, s{sP+14}, s{sT}"); A(f"s_addc_u32 s{sBX+1}, s{sP+15}, 0")
    A(f"s_mov_b32 s{sT}, {spin}")
    A("s_waitcnt vmcnt(8)")
    A("L_cpoll:")
    A(f"v_readfirstlane_b32 s{sT+1}, v{vCNT}"); A(f"s_cmp_ge_u32 s{sT+1}, 16"); A("s_cbranch_scc1 L_cok")
    A(f"buffer_load_dword v{vCNT}, v{vCA}, s[{sD}:{sD+3}], 0 offen sc1")
    A(f"s_sub_u32 s{sT}, s{sT}, 1"); A("s_cbranch_scc1 L_cok")
    A("s_waitcnt vmcnt(0)"); A("s_branch L_cpoll")
    A("L_cok:")
    def inload():
        for j in range(8): A(f"buffer_load_dwordx4 v[{inb[j]}:{inb[j]+3}], v{vBO}, s[{sBX}:{sBX+3}], {'s%d' % (sT+2) if j >= 4 else '0'} offen offset:{(j&3)*1024} sc1")
    inload()
    A("s_waitcnt lgkmcnt(0)"); A("s_barrier")
    rorder = [('Q2', 0)] + [x for i in range(4) for x in (('Q1', i), ('S', i), ('Q2', i+1))]
    for n in rorder:
        a, o = xloc(XQ.index(n)); A(f"ds_read_b128 v[{rcv[n]}:{rcv[n]+3}], v{vRR+a} offset:{o}")
    stamp(6)
    vPAR = 16; vPUBA = 3; vPOLA = 4; vOA = 14
    A("v_and_b32 v1, 15, v0"); A("v_lshrrev_b32 v2, 4, v0")
    for k in range(6): A(f"v_accvgpr_read_b32 v{vPAR+k}, a{196+k}")
    A(f"v_cmp_gt_u32 s[{sMKA}:{sMKA+1}], 15, v1")
    A(f"s_lshl_b32 s{sT+1}, s{sKH}, 8"); A(f"s_lshl_b32 s{sINV}, s{sNH}, 7"); A(f"s_add_u32 s{sT+1}, s{sT+1}, s{sINV}")
    A(f"v_lshlrev_b32 v{vPUBA}, 5, v2"); A(f"v_add_u32 v{vPUBA}, s{sT+1}, v{vPUBA}")
    A(f"v_lshl_add_u32 v{vPOLA}, v1, 9, v{vPUBA}")
    A(f"s_lshl_b32 s{sT+1}, s{sTILE}, 10"); A(f"s_lshl_b32 s{sINV}, s{sKS}, 9"); A(f"s_add_u32 s{sT+1}, s{sT+1}, s{sINV}")
    A(f"v_lshl_add_u32 v{vPUBA}, v1, 4, v{vPUBA}"); A(f"v_add_u32 v{vPUBA}, s{sT+1}, v{vPUBA}")
    A(f"s_mov_b32 s{sIDX}, {spin}")
    colbase(A, 0)
    A(f"s_mul_i32 s{sT+1}, s{sTILE}, {TS*1024}"); A(f"s_add_u32 s{sT}, s{sT}, s{sT+1}"); A(f"s_lshl_b32 s{sT+1}, s{sKS}, 13"); A(f"s_add_u32 s{sT}, s{sT}, s{sT+1}")
    A(f"v_lshlrev_b32 v{vOA}, 3, v2"); A(f"v_lshl_add_u32 v{vOA}, v1, 14, v{vOA}"); A(f"v_add_u32 v{vOA}, s{sT}, v{vOA}"); A(f"v_add_u32 v{vOA+1}, 4096, v{vOA}")
    A(f"s_mul_i32 s{sT}, s{sB}, {1985*1024}"); A(f"s_add_u32 s{sO}, s{sP+10}, s{sT}"); A(f"s_addc_u32 s{sO+1}, s{sP+11}, 0")
    A(f"s_mov_b32 s{sO+2}, {1985*1024}"); A(f"s_mov_b32 s{sO+3}, 0x20000")
    A(f"s_cmp_eq_u32 s{sTILE}, 7"); A(f"s_cselect_b64 s[{sMK0}:{sMK0+1}], -1, s[{sMKA}:{sMKA+1}]")
    A(f"s_mov_b32 s{sINV}, 0x3c088889"); A(f"s_cmov_b32 s{sINV}, 0x3c0767ab")
    A(f"s_cmp_eq_u32 s{sKS}, 0"); A(f"s_cmov_b64 s[{sMK0}:{sMK0+1}], -1"); A(f"s_cmov_b64 s[{sMKA}:{sMKA+1}], -1"); A(f"s_cmov_b32 s{sINV}, 0x3c000000")
    def pk(op, d, a, b, c=None, mod=""):
        s = f"v_pk_{op}_f32 v[{d}:{d+1}], v[{a}:{a+1}], v[{b}:{b+1}]"
        if c is not None: s += f", v[{c}:{c+1}]"
        A(s + mod)
    NEG = " neg_lo:[0,1] neg_hi:[0,1]"
    def q(op, d, a, b, mod=""): pk(op, d, a, b, mod=mod); pk(op, d+2, a+2, b+2, mod=mod)
    for i, n in enumerate(rorder):
        A(f"s_waitcnt lgkmcnt({12-i})"); q('add', own[n], own[n], rcv[n])
        if n == ('Q2', 4):
            A(f"s_cbranch_scc1 L_nodpp"); A("s_nop 0")
            for e in range(4): A(f"v_mov_b32_dpp v{own[n]+e}, v{own[n]+e} row_shl:1 row_mask:0xf bank_mask:0xf bound_ctrl:1")
            A("L_nodpp:")
        if n[0] == 'Q2' and n[1] > 0:
            k = n[1]-1
            q('add', own[('S', k)], own[('S', k)], own[('Q1', k)], NEG); q('add', own[('Q1', k)], own[('Q1', k)], own[('Q2', k)]); q('add', own[('S', k)], own[('S', k)], own[n], NEG)
    V = [own[('Q1' if j % 2 == 0 else 'S', j >> 1)] for j in range(8)]
    tv = [b for b in range(vH, 256, 4) if b not in V and b not in inb]
    def grab(n):
        for b in tv:
            if all(b + 4*i in tv for i in range(n)):
                for i in range(n): tv.remove(b + 4*i)
                return b
        raise RuntimeError("grab")
    vZ2 = [grab(5), grab(5)]; vG = grab(2); vK = grab(2); vN = vK + 6
    vS, vM, vQ, vPUB, vU, vAc, vCc, vBI, vGA, vBE = [grab(1) for _ in range(10)]
    for k, dst in ((0, vBI), (1, vGA), (2, vBE)):
        A(f"v_lshlrev_b32 v{dst}, 16, v{vPAR+2*k}"); A(f"v_and_b32 v{dst+1}, 0xffff0000, v{vPAR+2*k}")
        A(f"v_lshlrev_b32 v{dst+2}, 16, v{vPAR+2*k+1}"); A(f"v_and_b32 v{dst+3}, 0xffff0000, v{vPAR+2*k+1}")
    for i in range(4): A(f"v_mov_b32 v{vS+i}, 0"); A(f"v_mov_b32 v{vQ+i}, 0")
    stamp(22)
    A("L_ipoll:")
    A("s_waitcnt vmcnt(0)")
    for j in range(8):
        if j == 0: A(f"v_max3_u32 v{vU}, v{inb[0]}, v{inb[0]+1}, v{inb[0]+2}"); A(f"v_max_u32 v{vU+1}, v{inb[0]+3}, v{inb[0]+3}")
        else: A(f"v_max3_u32 v{vU}, v{vU}, v{inb[j]}, v{inb[j]+1}"); A(f"v_max3_u32 v{vU+1}, v{vU+1}, v{inb[j]+2}, v{inb[j]+3}")
    A(f"v_max_u32 v{vU}, v{vU}, v{vU+1}")
    A(f"v_cmp_eq_u32 vcc, -1, v{vU}"); A("s_nop 1")
    A("s_cbranch_vccz L_iok")
    A(f"s_sub_u32 s{sIDX}, s{sIDX}, 1"); A("s_cbranch_scc1 L_iok")
    inload()
    A("s_branch L_ipoll")
    A("L_iok:")
    stamp(23)
    for j in range(8): q('add', V[j], V[j], inb[j])
    def dppred(b):
        for sh in (8, 4, 2, 1):
            for i in range(4): A(f"v_add_f32_dpp v{b+i}, v{b+i}, v{b+i} row_ror:{sh} row_mask:0xf bank_mask:0xf")
    def setexec(j):
        if j == 0: A(f"s_mov_b64 exec, s[{sMK0}:{sMK0+1}]")
        if j == 1: A(f"s_mov_b64 exec, s[{sMKA}:{sMKA+1}]")
    for j in range(8): setexec(j); q('add', vS, vS, V[j])
    A("s_mov_b64 exec, -1"); A("s_nop 0")
    dppred(vS)
    for i in range(4): A(f"v_mul_f32 v{vM+i}, s{sINV}, v{vS+i}")
    for j in range(8):
        setexec(j); o = V[j]
        q('add', o, o, vM, NEG); pk('fma', vQ, o, o, vQ); pk('fma', vQ+2, o+2, o+2, vQ+2)
    A("s_mov_b64 exec, -1")
    q('add', vM, vM, vBI)
    A("v_cmp_eq_u32 vcc, 1, v1")
    dppred(vQ)
    A(f"v_cndmask_b32 v{vPUB}, v{vM}, v{vM+2}, vcc"); A(f"v_cndmask_b32 v{vPUB+2}, v{vM+1}, v{vM+3}, vcc")
    A(f"v_cndmask_b32 v{vPUB+1}, v{vQ}, v{vQ+2}, vcc"); A(f"v_cndmask_b32 v{vPUB+3}, v{vQ+1}, v{vQ+3}, vcc")
    A("v_cmp_gt_u32 vcc, 2, v1")
    for i in range(4): A(f"v_min_u32 v{vPUB+i}, -2, v{vPUB+i}")
    A("s_mov_b64 exec, vcc")
    A(f"buffer_store_dwordx4 v[{vPUB}:{vPUB+3}], v{vPUBA}, s[{sS}:{sS+3}], 0 offen sc1")
    A("s_mov_b64 exec, -1")
    stamp(7)
    A(f"v_mov_b32 v{vK}, 0xc0135761"); A(f"v_mov_b32 v{vK+1}, 0xc0135761")
    A(f"v_mov_b32 v{vK+2}, 0xbdd2d3e8"); A(f"v_mov_b32 v{vK+3}, 0xbdd2d3e8")
    A(f"v_mov_b32 v{vK+4}, 1.0"); A(f"v_mov_b32 v{vK+5}, 1.0")
    A(f"v_and_b32 v{vN+1}, 1, v1"); A(f"v_cmp_eq_u32 vcc, 15, v1"); A(f"v_lshlrev_b32 v{vN+1}, 3, v{vN+1}"); A(f"v_sub_u32 v{vN}, 128, v{vN+1}")
    A(f"v_addc_co_u32 v{vN}, vcc, 0, v{vN}, vcc"); A(f"v_cvt_f32_u32 v{vN}, v{vN}")
    A(f"s_mov_b32 s{sIDX}, {spin}")
    A("L_poll:")
    A(f"buffer_load_dwordx4 v[{vG}:{vG+3}], v{vPOLA}, s[{sS}:{sS+3}], 0 offen sc1")
    A(f"buffer_load_dwordx4 v[{vG+4}:{vG+7}], v{vPOLA}, s[{sS}:{sS+3}], 0 offen offset:16 sc1")
    A(f"s_sub_u32 s{sIDX}, s{sIDX}, 1"); A("s_cbranch_scc1 L_pollout")
    A("s_waitcnt vmcnt(0)")
    A(f"v_max3_u32 v{vU}, v{vG}, v{vG+1}, v{vG+2}"); A(f"v_max3_u32 v{vU+1}, v{vG+3}, v{vG+4}, v{vG+5}")
    A(f"v_max3_u32 v{vU}, v{vU}, v{vG+6}, v{vG+7}"); A(f"v_max_u32 v{vU}, v{vU}, v{vU+1}")
    A(f"v_cmp_eq_u32 vcc, -1, v{vU}"); A("s_nop 1")
    A("s_cbranch_vccnz L_poll")
    A("L_pollout:")
    A("s_waitcnt vmcnt(0)")
    stamp(8)
    for i in range(4): A(f"v_mul_f32 v{vS+i}, v{vN}, v{vG+2*i}")
    A(f"s_mov_b32 s{sT}, 0x3a040ffe"); A(f"s_mov_b32 s{sT+1}, 0x3727c5ac")
    dppred(vS)
    for i in range(4): A(f"v_mul_f32 v{vS+i}, s{sT}, v{vS+i}")
    for i in range(4): A(f"v_sub_f32 v{vU+i}, v{vG+2*i}, v{vS+i}")
    for i in range(4): A(f"v_mul_f32 v{vQ+i}, v{vN}, v{vU+i}")
    for i in range(4): A(f"v_fma_f32 v{vU+i}, v{vQ+i}, v{vU+i}, v{vG+2*i+1}")
    A(f"v_mov_b32 v{vN+1}, s{sT+1}"); A("s_nop 0")
    dppred(vU)
    for i in range(4): A(f"v_fma_f32 v{vU+i}, v{vU+i}, s{sT}, v{vN+1}")
    for i in range(4): A(f"v_rsq_f32 v{vU+i}, v{vU+i}")
    for i in range(4): A(f"v_sub_f32 v{vM+i}, v{vM+i}, v{vS+i}")
    for i in range(4): A(f"v_mul_f32 v{vAc+i}, v{vU+i}, v{vGA+i}")
    for i in range(4): A(f"v_fma_f32 v{vCc+i}, v{vM+i}, v{vAc+i}, v{vBE+i}")
    for f0 in range(0, 8, 2):
        z = vZ2[(f0 >> 1) & 1]; t = z + 8; pkr = z + 16
        for h in range(4): pk('fma', z+2*h, V[f0 + (h >> 1)] + 2*(h & 1), vAc+2*(h & 1), vCc+2*(h & 1))
        for h in range(4): pk('mul', t+2*h, z+2*h, z+2*h)
        for h in range(4): pk('fma', t+2*h, t+2*h, vK+2, vK)
        for h in range(4): pk('mul', t+2*h, t+2*h, z+2*h)
        for k in range(8): A(f"v_exp_f32 v{t+k}, v{t+k}")
        for h in range(4): pk('add', t+2*h, t+2*h, vK+4)
        for k in range(8): A(f"v_rcp_f32 v{t+k}, v{t+k}")
        for h in range(4): pk('mul', z+2*h, t+2*h, z+2*h)
        for h in range(4): A(f"v_cvt_pk_bf16_f32 v{pkr+h}, v{z+2*h}, v{z+2*h+1}")
        for k in range(2):
            j = f0 + k
            if j == 0: A(f"s_mov_b64 exec, s[{sMK0}:{sMK0+1}]")
            if j == 1: A(f"s_mov_b64 exec, s[{sMKA}:{sMKA+1}]")
            A(f"buffer_store_dwordx2 v[{pkr+2*k}:{pkr+2*k+1}], v{vOA + (j>>2)}, s[{sO}:{sO+3}], 0 offen offset:{(j&3)*1024}")
    if stamps:
        A("s_mov_b64 exec, -1")
        stamp(9); A("s_waitcnt vmcnt(0)"); stamp(10); A(f"s_memrealtime s[{sST+30}:{sST+31}]")
        A("s_waitcnt lgkmcnt(0)")
        A(f"s_add_u32 s{sX}, s{sP+14}, 0x8000000"); A(f"s_addc_u32 s{sX+1}, s{sP+15}, 0"); A(f"s_mov_b32 s{sX+2}, 0x100000"); A(f"s_mov_b32 s{sX+3}, 0x20000")
        A(f"s_getreg_b32 s{sST+22}, hwreg(HW_REG_XCC_ID)"); A(f"s_getreg_b32 s{sST+23}, hwreg(HW_REG_HW_ID)")
        A(f"s_xor_b32 s{sT}, s{sPRT}, {8 if mapm == 0 else 1}"); A(f"s_lshl_b32 s{sT}, s{sT}, 2"); A(f"s_add_u32 s{sT}, s{sT}, s{sWV}"); A(f"s_lshl_b32 s{sT}, s{sT}, 7")
        for i in range(32): A(f"v_mov_b32 v{24+i}, s{sST+i}")
        A("v_mov_b32 v2, 0"); A("s_mov_b64 exec, 1")
        for i in range(8): A(f"buffer_store_dwordx4 v[{24+4*i}:{27+4*i}], v2, s[{sX}:{sX+3}], s{sT} offen offset:{16*i}")
        A("s_waitcnt vmcnt(0)")
    A("L_done:"); A("s_endpgm")
    A('.section .rodata,"a"'); A(".p2align 6"); A(f".amdhsa_kernel {KN}")
    A("  .amdhsa_next_free_vgpr 512"); A("  .amdhsa_next_free_sgpr 102"); A("  .amdhsa_accum_offset 256")
    A("  .amdhsa_group_segment_fixed_size 0"); A("  .amdhsa_kernarg_size 64"); A("  .amdhsa_user_sgpr_count 2")
    A("  .amdhsa_user_sgpr_kernarg_segment_ptr 1"); A("  .amdhsa_system_sgpr_workgroup_id_x 1"); A(".end_amdhsa_kernel")
    open(name + ".s", "w").write("\n".join(L) + "\n")
    build(name + ".s")
    return name

if __name__ == "__main__":
    for a in sys.argv[1:]:
        nm, _, kw = a.partition(":")
        gen(nm, **(eval("dict(" + kw + ")") if kw else {}))
```

```python
import sys, os, re
from build import build
from gen import Stream, resolve, prune_waits, emit, KN, HDR

XS = 36864
WBASE = 2*XS
SPARE = WBASE + 65536
LDS = SPARE + 16384
TS = 248
BOX = 1 << 21

class Gap:
    def __init__(s):
        s.mfma = None; s.mneed = []; s.mem = None; s.valu = []; s.nds = []; s.nvm = []; s.scal = []; s.need = None

def gen(name, stamps=0, stampset=0, exact=0, spin=1<<18, pref=1, xpf=1, xmax=2, lat=8, mapm=0,
        bp=1, dmp=(12, 18, 24, 30), xdp=(36, 40, 44), xdk=(7, 0, 1), jx=4, pfpos=34,
        curx=((0, 10), (0, 38), (1, 10), (1, 38), (2, 10), (2, 38), (3, 10)),
        nxt=None, nS0=8, cnk=3, clrk=None, pord='fx0ts1|g23ypc', xdc=((0,1,2),(3,4,5),(6,7,8)), otouch=0, wdel=8, sto=(40, 46, 54, 60, 68, 74, 82, 88), bpB=8, rlead=10, vmcost=2, nsets=45, xdp7=(15, 21, 27),
        fcur=None, lpoll=1, inp=(104,110,118,124,132,138,146,155), tch=0, bp7=30, w7=4, peel=0, bp0=(24,1,1,1,1,1,1,1), dmp0=(26,31,36,41), xf0=((0,4,0),(0,10,1),(0,16,2),(1,36,3),(1,42,4),(2,36,5),(2,42,6),(3,36,7),(3,42,8)), pvm=(), parf=1, pfp0=(0,44), noclr=0, apub='', epoll=0, ackw=1, spol='sc1', lpol='sc1', stch=0, cntp=0, cop=1, wj=2, wth=2, fillp=13, odel=6, npoll=1, oord=(('Q2',6),('Q1',6),('S',6),('Q2',7),('S',7)), oshad=(('Q2',0),('Q2',4),('Q1',0),('Q1',1)), arr=(), opol='', nodma=0, nox=0, noval=0, noxch=0):
    L = []; A = L.append
    A(HDR.rstrip("\n"))
    A(f"; @launch grid=(256,1,1) block=(256,1,1) lds={LDS}")
    A('.amdgcn_target "amdgcn-amd-amdhsa--gfx950"')
    A(".text"); A(f".globl {KN}"); A(".p2align 8"); A(f".type {KN},@function"); A(f"{KN}:")
    vAA = 1; vTA = 3; vWO = 5; vWB = 7; vVX = 9; vPF = 11; vPX = 12; vWK = 14; vT = 16; vH = 28; vXS = 76
    vRW = 5; vRR = 7; vBO = 9; vCA = 10; vIA = 11; vPOLA = 12; vCNT = 13; vOA = 14; vPUBA = 3
    sM1 = 2; sM2 = 22
    assert mapm >= 1
    aXS = 204; NAS = 13
    sX = 4; sW = 8; sS = 12; sO = 4; sD = 16
    sWV = 24; sNS = 25; sTILE = 26; sB = 27; sGRP = 28; sKH = 29; sM0 = 30; sKS = 31; sNH = 32; sSTEP = 33; sXD = 34
    sWC = 35; sWO = 36; sCNT = 37; sT = 38
    sXM = 41; sXM2 = 46; sMKA = 42; sMK0 = 44; sINV = 46; sIDX = 47
    sP = 48; sST = 64; sBX = 96
    sK4 = 95; sPRT = 100; sXO = 101; sXQ = 3; sPFO = 2; sPX = 0; sMSK = 1; sSEL = 20; sPFA = 21; sXB = 23
    if nxt is None:
        nxt = [(4, 10), (4, 11), (4, 13), (4, 32), (4, 33), (5, 10), (5, 11), (5, 32), (5, 33), (6, 10), (6, 11), (6, 32), (6, 33), (7, 9), (7, 10), (7, 20), (7, 21)]
    if fcur is None: fcur = [(24*i + 10) for i in range(7)]
    PROD = {'Q2': 0, 'Q1': 1, 'S': 2}
    def accr(prod, f, nb): return (PROD[prod]*16 + f*2 + nb)*4
    def acc(prod, f, nb): b = accr(prod, f, nb); return f"a[{b}:{b+3}]"
    def hreg(which, buf, nb): return vH + ((which*2 + buf)*2 + nb)*4
    def stamp(k, S=None):
        if not stamps: return
        mp = [{}, {7: None, 8: None, 20: 7, 21: 8}, {4: None, 22: 2, 23: 3, 24: 4}, {6: None, 7: None, 8: None, 9: None, 27: 6, 25: 7, 26: 8, 21: 9}, {2: None, 3: None, 4: None, 5: None, 6: None, 7: None, 8: None, 9: None, 30: 2, 31: 3, 32: 4, 33: 5, 34: 6, 35: 7, 36: 8, 37: 9}, {9: None, 40: 9}][stampset]
        k = mp.get(k, k)
        if k is None or k >= 20: return
        s = f"s_memtime s[{sST+2*k}:{sST+2*k+1}]"
        (S.i if S else A)(s)
    cur = {'alloc': {}}
    def Rn(n): return cur['alloc'][n]
    def R(n):
        c, b = Rn(n); assert c == 'v', n; return b
    def RR(n): c, b = Rn(n); return f"{c}[{b}:{b+3}]"
    def vr(b, n=4): return f"v[{b}:{b+n-1}]"
    def tr(slot, which, buf, nb, h):
        d = hreg(which, buf, nb) + 2*h
        return ('ds', ('H', which, buf, nb), f"ds_read_b64_tr_b16 v[{d}:{d+1}], v{vTA + nb} offset:{slot*4096 + h*512}")
    def xread(n):
        ty, p, g = n; gam = 2*g + (1 if ty[0] == 'U' else 0)
        return ('ds', n, lambda: f"ds_read_b128 {RR(n)}, v{vAA + (gam>>4)} offset:{p*XS + (gam&15)*256}")
    def wdma(P, vo, d): return ('vm', ('W', P % 16), f"buffer_load_dwordx4 v{vo+d}, s[{sW}:{sW+3}], s{sWO} offen offset:{d*1024} lds")
    def xdma(p, c): return ('vm', ('XD', p), f"buffer_load_dwordx4 v{vVX + (c >> 3)}, s[{sX}:{sX+3}], s{sXO} offen lds")
    def xm0(p, c): return f"s_add_u32 m0, s{sXM}, {p*XS + (c >> 2)*16384 + (c & 3)*1024}" if c < 8 else f"s_add_u32 m0, s{sXM2}, {p*XS + 32768}"
    def xgo(c): return ((c >> 2)*128 + (c & 3)*4)*2048 if c < 8 else 0
    def clr(j): return f"buffer_store_dwordx4 a[200:203], v{vCNT}, s[{sBX}:{sBX+3}], {'s%d' % sK4 if j >= 4 else '0'} offen offset:{(j&3)*1024} sc1"
    tcount = [0]
    def tmp():
        i = tcount[0]; tcount[0] += 1
        return vT + 6*(i & 1), i
    def addops(a, b, o):
        T, i = tmp()
        if exact:
            return [lambda: f"v_lshlrev_b32 v{T}, 16, v{a()}", lambda: f"v_lshlrev_b32 v{T+1}, 16, v{b()}",
                    lambda: f"v_and_b32 v{T+2}, s{sMSK}, v{a()}", lambda: f"v_and_b32 v{T+3}, s{sMSK}, v{b()}",
                    lambda: f"v_add_f32 v{T}, v{T}, v{T+1}", lambda: f"v_add_f32 v{T+2}, v{T+2}, v{T+3}",
                    lambda: f"v_lshlrev_b32 v{T+4}, 16, v{a()+1}", lambda: f"v_lshlrev_b32 v{T+5}, 16, v{b()+1}",
                    lambda: f"v_cvt_pk_bf16_f32 v{o()}, v{T}, v{T+2}",
                    lambda: f"v_and_b32 v{T+1}, s{sMSK}, v{a()+1}", lambda: f"v_and_b32 v{T+3}, s{sMSK}, v{b()+1}",
                    lambda: f"v_add_f32 v{T+4}, v{T+4}, v{T+5}", lambda: f"v_add_f32 v{T+1}, v{T+1}, v{T+3}",
                    lambda: f"v_cvt_pk_bf16_f32 v{o()+1}, v{T+4}, v{T+1}"]
        ops = [lambda: f"v_lshlrev_b64 v[{T}:{T+1}], 16, v[{a()}:{a()+1}]", lambda: f"v_lshlrev_b64 v[{T+2}:{T+3}], 16, v[{b()}:{b()+1}]",
               lambda: f"v_add_f32 v{T+4}, v{a()}, v{b()}", lambda: f"v_add_f32 v{T+5}, v{a()+1}, v{b()+1}",
               lambda: f"v_add_f32 v{T}, v{T}, v{T+2}", lambda: f"v_add_f32 v{T+1}, v{T+1}, v{T+3}"]
        if i & 1: ops.append(lambda: f"v_cvt_pk_bf16_f32 v{o()}, v{T}, v{T+4}")
        else: ops.append(lambda: f"v_perm_b32 v{o()}, v{T+4}, v{T}, s{sSEL}")
        ops.append(lambda: f"v_perm_b32 v{o()+1}, v{T+5}, v{T+1}, s{sSEL}")
        return ops
    def hjob(a, b, o, half): return addops(lambda: a+2*half, lambda: b+2*half, lambda: o+2*half)
    def sjob(p, g, half): return addops(lambda: R(('U', p, g))+2*half, lambda: R(('E', p, g+1))+2*half, lambda: R(('S', p, g))+2*half)

    class Sec:
        def __init__(S, p):
            S.G = []; S.p = p; S.uses = {}; S.jobs = []; S.sreq = []; S.issue = {}; S.m0u = []; S.wou = []; S.xou = []; S.base = []
        def use(S, n, g): S.uses.setdefault(n, []).append(g)
        def put(S, gi, item):
            while S.G[gi].mem is not None: gi += 1
            S.G[gi].mem = item; return gi
        def putds(S, gi, item, reg=True):
            gi = S.put(gi, item); S.issue[item[1]] = gi
            if reg and item[1][0] != 'H': S.use(item[1], gi)
            return gi
        def job(S, ops, rdy, dl, needs=(), reads=(), writes=(), after=None):
            j = dict(ops=list(ops), rdy=rdy, dl=dl, needs=list(needs), reads=list(reads), writes=list(writes), after=after or [])
            S.jobs.append(j); return j
        def mf(S, prod, f, nb, n, hb, hn, first_n, first_h, k, zero=False):
            g = Gap()
            g.mfma = (lambda: f"v_mfma_f32_16x16x32_bf16 {acc(prod,f,nb)}, {vr(hb)}, {RR(n)}, {'0' if zero else acc(prod,f,nb)}")
            if first_n and n[0] != 'S': g.mneed.append(n)
            if first_h and hn is not None: g.mneed.append(hn)
            g.prod = prod; g.f = f; g.nb = nb; g.k = k; g.hb = hb
            S.use(n, len(S.G)); S.G.append(g)
        def mf2(S, prod, fs, nb, ty, kk, hb, hn, k):
            g = Gap(); ns_ = {ks: (ty, 1, kk + fs[ks]) for ks in (0, 1)}
            g.mfma = (lambda: {ks: f"v_mfma_f32_16x16x32_bf16 {acc(prod,fs[ks],nb)}, {vr(hb)}, {RR(ns_[ks])}, {acc(prod,fs[ks],nb)}" for ks in (0, 1)})
            if ty != 'S': g.mneed += list(ns_.values())
            if hn is not None: g.mneed.append(hn)
            g.prod = prod; g.f = None; g.nb = nb; g.k = k; g.hb = hb
            for n in ns_.values(): S.use(n, len(S.G))
            S.G.append(g); return len(S.G) - 1
        def macro(S, K, b, P, tiles, dma, vo, dmp_, barpos):
            G = S.G; buf = (K+1) & 1
            pb = K & 1
            G[b+barpos-1].nds += [('H', 0, pb, 1), ('H', 1, pb, 1)] if not getattr(S, 'single%d' % K, 0) else [('H', 0, pb, 1)]
            if tiles and not nodma: G[b+barpos-1].nvm.append(('W', (P+1) % 16))
            G[b+barpos].scal.append("s_barrier")
            gi = b+barpos
            for slot, which in tiles:
                for nb in range(2):
                    for h in range(2): gi = S.putds(gi, tr(slot, which, buf, nb, h))
            i = 0
            for slot, txt in dma:
                if nodma: break
                gs = [S.put(b+max((dmp_ or dmp)[i+d], barpos+1), wdma(P+4, vo, d)) for d in range(2)]; i += 2
                for x in gs: S.m0u.append((x, f"s_add_u32 m0, s{sM0}, {slot*4096}"))
                S.wou.append((gs[0], gs[1], txt))
        def schedule(S):
            G = S.G; NG = len(G)
            cap = [2 - ((vmcost if g.mem[0] == 'vm' else 1) if g.mem else 0) for g in G]
            pend = sorted(S.jobs, key=lambda j: (j['dl'], j['rdy']))
            for j in pend: j['pos'] = 0; j['done'] = None
            c = None
            for gi in range(NG):
                n = cap[gi]
                for d in sorted(set(j['dl'] for j in pend)):
                    dem = sum(len(j['ops']) - j['pos'] for j in pend if j['dl'] <= d)
                    sup = sum(cap[x] + xmax for x in range(gi+1, d+1))
                    n = max(n, dem - sup)
                while n > 0:
                    if c is None:
                        cs = [j for j in pend if j['rdy'] <= gi and all(a['done'] is not None for a in j['after'])]
                        if not cs: break
                        c = cs[0]; c['start'] = gi
                        G[gi].nds += c['needs']
                    G[gi].valu.append(c['ops'][c['pos']]); c['pos'] += 1; n -= 1
                    if c['pos'] == len(c['ops']):
                        assert gi <= c['dl'], ("deadline miss", S.p, gi, c['dl'], c['ops'][0]())
                        for x in c['reads']: S.use(x, gi)
                        for x in c['writes']: S.use(x, c['start']); S.use(x, gi)
                        c['done'] = gi; pend.remove(c); c = None
            assert not pend, ("unscheduled", len(pend))
            S.idle = sum(max(0, cap[i] - len(G[i].valu)) for i in range(NG)); S.extra = sum(max(0, len(G[i].valu) - cap[i]) for i in range(NG))
            S.m0u.sort(); S.wou.sort(); S.xou.sort()
            prev = -1; ptxt = None
            for gi, txt in S.m0u:
                if txt != ptxt: S.sreq.append((prev if prev >= 0 else 0, gi-1, [txt], prev))
                prev = gi; ptxt = txt
            for lst in (S.wou, S.xou):
                pw_ = -1
                for first, last, txt in lst:
                    assert pw_ < first
                    S.sreq.append((pw_ if pw_ >= 0 else 0, first-1, [txt], pw_)); pw_ = last

    NXT = [('E', 0)] + [x for g in range(8) for x in (('U', g), ('E', g+1))]
    def section(p, first=False):
        S = Sec(p); G = S.G; q = 1-p
        bps = bp0 if first else [bp]*8
        for k in range(8):
            S.base.append(len(G))
            single = (p == 1 and k == 7)
            prods = [('Q2', 0, 'E')] + ([('S', 0, 'S')] if single else [('Q1', 1, 'U'), ('S', 2, 'S')])
            for prod, which, ty in prods:
                for m in range(16):
                    f = m >> 1; nb = (m & 1) ^ (f & 1)
                    S.mf(prod, f, nb, (ty, p, k+f), hreg(which, k & 1, nb), ('H', which, k & 1, nb) if which < 2 else None, (m & 1) == 0, f == 0, k, first and k == 0)
        NG = len(G); S.base.append(NG); base = S.base
        if p == 1: S.single7 = 1
        for k in range(8):
            b = base[k]; P = 8*p + k
            P1 = (P+1) % 16; P4 = (P+4) % 16
            tiles = [((2*P1) % 8, 0)] + ([((2*P1+1) % 8, 1)] if P1 != 15 else [])
            dma = []
            for a in range(2 if P4 != 15 else 1):
                p4, k4 = P4 >> 3, P4 & 7
                off = (2*(2*k4+a) + p4)*524288 + (65536 if P+4 >= 16 else 0)
                if p == 0 and k >= 4 and not (k == 4 and a == 0): txt = f"s_add_u32 s{sWO}, s{sWO}, s{sSTEP}"
                else: txt = f"s_add_u32 s{sWO}, s{sWC}, {off}"
                dma.append(((2*P4+a) % 8, txt))
            S.macro(k, b, P, tiles, dma, vWB if (p == 0 and k >= 4) else vWO, dmp0 if (first and k == 0) else None, bps[k])
            if k == 7: G[b+bps[k]-1].nds += [('U', p, 14), ('E', p, 15)]
            if k == jx and not nox: G[b+bps[k]-1].nvm.append(('XD', q))
            if first:
                for k_, gp, c in xf0:
                    if k_ != k or nox: continue
                    gi = S.put(b+gp, xdma(1, c)); S.m0u.append((gi, xm0(1, c))); S.xou.append((gi, gi, f"s_mov_b32 s{sXO}, {1024 + xgo(c)}"))
                for k_, gp, w in pvm:
                    if k_ != k: continue
                    if w[0] in '23':
                        t_ = 2*int(w[0]) + 'ab'.index(w[1])
                        gs = [S.put(b+gp, wdma(int(w[0]), vWO, 0))]; gs.append(S.put(gs[0]+4, wdma(int(w[0]), vWO, 1)))
                        for x in gs: S.m0u.append((x, f"s_add_u32 m0, s{sM0}, {4096*t_}"))
                        S.wou.append((gs[0], gs[1], f"s_mov_b32 s{sWO}, {2*t_*524288}"))
                    elif w[0] == 'c': S.put(b+gp, ('vm', ('CLR',), clr(int(w[1]))))
                    else: raise ValueError(w)
            for i, xk in enumerate(xdk):
                if xk != k or nox or (first and k <= jx): continue
                tgt = p if k > jx else q
                for ci, c in enumerate(xdc[i]):
                    gp = xdp[ci] if base[k+1]-b >= 48 else xdp7[ci]
                    gi = S.put(b+gp, xdma(tgt, c)); S.m0u.append((gi, xm0(tgt, c)))
                    if k > jx: txt = f"s_add_u32 s{sXO}, s{sXB}, {xgo(c)}" if p == 0 else f"s_add_u32 s{sXO}, s{sXQ}, {1024 + xgo(c)}"
                    else: txt = f"s_add_u32 s{sXO}, s{sXQ}, {(1024 if p == 0 else 128) + xgo(c)}"
                    S.xou.append((gi, gi, txt))
            if k == (pfp0[0] if first else 0) and pref:
                gi = S.put(b+(pfp0[1] if first else pfpos), ('vm', ('PF',), f"buffer_load_dword a192, v{vPF}, s[{sW}:{sW+3}], s{sPFO} offen"))
                S.sreq.append((0, gi-1, [f"s_add_u32 s{sPFO}, s{sWC}, s{sPFA+q}"]))
            if k == 0 and xpf:
                gi = S.put(b+pfpos, ('vm', ('PX',), f"buffer_load_dword a193, v{vPX}, s[{sX}:{sX+3}], s{sPX} offen"))
                S.sreq.append((0, gi-1, [f"s_add_u32 s{sPX}, s{sXQ}, {128 + 1024*p}"]))
        if p == 1 and clrk:
            for j, (k, gp) in enumerate(clrk): S.put(base[k]+gp, ('vm', ('CLR',), clr(j)))
        for i, (k, gp) in enumerate(curx):
            gi = S.putds(base[k]+gp, xread(('U', p, 8+i))); S.putds(gi, xread(('E', p, 9+i)))
        for (ty, g), (k, gp) in zip(NXT, nxt):
            assert (k, gp) > (jx, bp)
            S.putds(base[k]+gp, xread((ty, q, g)))
        def fu(pred): return min(i for i, g in enumerate(G) if pred(g))
        for k in range(8):
            if p == 1 and k == 7: continue
            for nb in range(2):
                hs = hreg(2, k & 1, nb)
                dl = fu(lambda g: g.k == k and g.hb == hs) - 2
                rdy = 0 if k == 0 else S.issue_h[(k, nb)] if False else (0 if k == 0 else base[k-1] + bps[k-1] + 5 + 2*nb + lat)
                for hf in range(2): S.job(hjob(hreg(0, k & 1, nb), hreg(1, k & 1, nb), hs, hf), rdy, dl, [('H', 0, k & 1, nb), ('H', 1, k & 1, nb)])
        def sj(pp, g, rdy, dl):
            for hf in range(2): S.job(sjob(pp, g, hf), rdy, dl, [('U', pp, g), ('E', pp, g+1)], reads=[('U', pp, g), ('E', pp, g+1)], writes=[('S', pp, g)])
        for g in range(nS0, 8): sj(p, g, 0, min(S.uses[('S', p, g)]) - 2)
        for g in range(8, 15): sj(p, g, max(S.issue[('U', p, g)], S.issue[('E', p, g+1)]) + lat, min(S.uses[('S', p, g)]) - 2)
        for g in range(nS0): sj(q, g, max(S.issue[('U', q, g)], S.issue[('E', q, g+1)]) + lat, NG-1)
        S.schedule()
        return S

    XQ = [('Q1', i) for i in range(4)] + [('Q2', i) for i in range(5)] + [('S', i) for i in range(4)]
    def xf(ks, i): return (4*ks + i) & 7
    def xloc(idx): return (0, idx*1024) if idx < 9 else (1, (idx-9)*1024)
    def xw(prod, i, nb):
        a, o = xloc(XQ.index((prod, i)))
        return ('ds', ('XW',), {ks: f"ds_write_b128 v{vRW+a}, {acc(prod, xf(1-ks, i), nb)} offset:{o}" for ks in (0, 1)})
    def xr(prod, i):
        a, o = xloc(XQ.index((prod, i))); n = ('R', prod, i)
        return ('ds', n, lambda: f"ds_read_b128 {RR(n)}, v{vRR+a} offset:{o}")
    def inld(j, r): return f"buffer_load_dwordx4 {r}, v{vIA}, s[{sBX}:{sBX+3}], {'s%d' % sK4 if j >= 4 else '0'} offen offset:{(j&3)*1024} sc1"
    def final():
        S = Sec(1); G = S.G; hb_ = []; blk = {}
        for ph in range(2):
            nb = 1 - ph
            for k in range(8):
                K = ph*4 + (k >> 1); sub = k & 1
                if sub == 0: S.base.append(len(G))
                hb_.append(len(G))
                H0 = hreg(sub, K & 1, 0); H1 = hreg(sub, K & 1, 1); Hs = hreg(2, K & 1, sub)
                t0 = ('H', sub, K & 1, 0); t1 = ('H', sub, K & 1, 1)
                sfx = '2' if ph else ''
                prods = [('Q2', H0, t0, 'E'+sfx)] + ([('S', H0, t0, 'S')] if k == 7 else [('Q1', H1, t1, 'U'+sfx), ('S', Hs, None, 'S')])
                if ph == 1 and k >= 6:
                    for prod, hb, hn, ty in prods: blk[(prod, k)] = (hb, hn, ty)
                    continue
                for prod, hb, hn, ty in prods:
                    for f in range(8): S.mf(prod, f, nb, (ty, 1, k+f), hb, hn, True, f == 0, ph*8+k)
        fs_ = {}; fo_ = {}
        for prod, k in (('Q1', 6), ('Q2', 6), ('S', 6), ('Q2', 7), ('S', 7)):
            hb, hn, ty = blk[(prod, k)]
            for i in range(5 if prod == 'Q2' else 4): fs_[(prod, i)] = S.mf2(prod, {ks: xf(1-ks, i) for ks in (0, 1)}, 0, ty, k, hb, hn, 8+k)
        for prod, k in oord:
            hb, hn, ty = blk[(prod, k)]
            for i in range(1 if prod == 'Q2' else 0, 4): fo_[(prod, i)] = S.mf2(prod, {ks: xf(ks, i) for ks in (0, 1)}, 0, ty, k, hb, hn, 8+k)
        fo_[('Q2', 0)] = fs_[('Q2', 4)]; fo_[('Q2', 4)] = fs_[('Q2', 0)]
        NG = len(G); S.base.append(NG); base = S.base; hb_.append(NG); B0 = hb_[8]
        S.B0 = B0
        for K in range(8):
            b = base[K]; P = 8+K
            tiles = [((2*K+2) % 8, 0), ((2*K+3) % 8, 1)] if K < 7 else []
            dma = []
            if K < 4:
                for a in range(2): dma.append(((2*K+a) % 8, f"s_add_u32 s{sWO}, s{sWC}, {(4*(2*K+a)+1)*524288}"))
            S.macro(K, b, P, tiles, dma, vWK, None, bpB if K == 4 else bp7 if K == 7 else bp)
            if K == 3: G[b+bp-1].nvm.append(('XD', 0)) if not nox else None
        S.put(base[cnk]+34, ('vm', ('CN',), f"buffer_load_dword v{vCNT}, v{vCA}, s[{sD}:{sD+3}], 0 offen sc1"))
        for i in range(7):
            gi = S.putds(fcur[i], xread(('U', 1, 8+i))); S.putds(gi, xread(('E', 1, 9+i)))
        lastw = {}
        for i, g in enumerate(G): lastw[(g.prod, g.f, g.nb)] = i
        def fin(prod, nb): return max(lastw[(prod, f, nb)] for f in range(8))
        split = NG
        for prod, i in XQ:
            gi = S.put(max(lastw[(prod, xf(0, i), 1)], lastw[(prod, xf(1, i), 1)]) + 5, xw(prod, i, 1))
            split = min(split, gi); S.split = split
            assert gi < base[4] + bpB - 1, (prod, i, gi - base[4])
        G[base[4]+bpB-1].nds.append(('XW',))
        for ty in ('E2', 'U2'):
            for g in range(15):
                n = (ty, 1, g)
                if n not in S.uses: continue
                gi = min(S.uses[n]) - rlead
                while G[gi].mem is not None: gi -= 1
                S.putds(gi, xread(n))
        S.sreq.append((0, 6, [f"s_mul_i32 s{sT}, s{sWV}, 9216"])); S.sreq.append((0, 6, [f"s_lshl_b32 s{sT+1}, s{sWV}, 12"])); S.sreq.append((0, 6, [f"s_lshl_b32 s{sT+2}, s{sGRP}, 4"]))
        pre = S.job([lambda: f"v_lshlrev_b32 v{vBO}, 4, v0", lambda: f"v_mov_b32 v{vCA}, s{sT+2}", lambda: f"v_add_u32 v{vRW}, s{sT}, v{vBO}",
                     lambda: f"v_add_u32 v{vRW+1}, s{sT+1}, v{vBO}",
                     lambda: f"v_xor_b32 v{vRR+1}, 8192, v{vRW+1}", lambda: f"v_add_u32 v{vRW+1}, {SPARE}, v{vRW+1}", lambda: f"v_add_u32 v{vRR+1}, {SPARE}, v{vRR+1}"], 10, 30)
        S.sreq.append((31, 40, [f"s_xor_b32 s{sT}, s{sWV}, 2"])); S.sreq.append((41, 50, [f"s_mul_i32 s{sT}, s{sT}, 9216"])); S.sreq.append((31, 40, [f"s_lshl_b32 s{sT+1}, s{sKH}, 2"])); S.sreq.append((41, 45, [f"s_add_u32 s{sT+1}, s{sT+1}, s{sWV}"])); S.sreq.append((46, 50, [f"s_lshl_b32 s{sT+1}, s{sT+1}, 13"]))
        S.job([lambda: f"v_add_u32 v{vRR}, s{sT}, v{vBO}", lambda: f"v_add_u32 v{vBO}, s{sT+1}, v{vBO}"], 54, 100)
        def fu(pred): return min(i for i, g in enumerate(G) if pred(g))
        for hp in range(16):
            if hp & 7 == 7: continue
            K = hp >> 1; sub = hp & 1
            hs = hreg(2, K & 1, sub)
            dl = fu(lambda g: g.k == hp and g.hb == hs) - 2
            rdy = 0 if K == 0 else base[K-1] + (bpB if K-1 == 4 else bp) + 3 + 4*sub + lat
            if K > 0: rdy = max(rdy, max(i for i, g in enumerate(G) if g.k == hp-4 and g.hb == hs) + 1) if hp >= 4 and any(g.k == hp-4 and g.hb == hs for g in G) else rdy
            for hf in range(2): S.job(hjob(hreg(sub, K & 1, 0), hreg(sub, K & 1, 1), hs, hf), rdy, dl, [('H', sub, K & 1, 0), ('H', sub, K & 1, 1)])
        def sj(g, rdy, dl):
            for hf in range(2): S.job(sjob(1, g, hf), rdy, dl, [('U', 1, g), ('E', 1, g+1)], reads=[('U', 1, g), ('E', 1, g+1)], writes=[('S', 1, g)])
        for g in range(nS0, 8): sj(g, 0, min(S.uses[('S', 1, g)]) - 2)
        for g in range(8, 15): sj(g, max(S.issue[('U', 1, g)], S.issue[('E', 1, g+1)]) + lat, min(S.uses[('S', 1, g)]) - 2)
        spos = []
        for j in range(8):
            n = ('O', 'Q1' if j % 2 == 0 else 'S', j >> 1)
            gi = S.put(B0 + sto[j], ('vm', ('ST',), (lambda n=n, j=j: f"buffer_store_dwordx4 {RR(n)}, v{vBO}, s[{sBX}:{sBX+3}], {'s%d' % sK4 if j >= 4 else '0'} offen offset:{(j&3)*1024} sc1")))
            S.use(n, gi); S.use(n, gi+1); spos.append(gi)
        def own(prod, i, nm, nb, rdy, dl):
            n = (nm, prod, i)
            return S.job([(lambda e=e: {ks: f"v_accvgpr_read_b32 v{R(n)+e}, a{accr(prod, xf(ks, i), nb)+e}" for ks in (0, 1)}) for e in range(4)], rdy, dl, writes=[n])
        dlq = {}
        for i in range(4):
            dlq[('Q1', i)] = spos[2*i] - 8; dlq[('S', i)] = spos[2*i] - 8
        for i in range(5): dlq[('Q2', i)] = spos[2*max(i-1, 0)] - 8
        order = sorted(XQ, key=lambda x: dlq[x])
        gi = base[4] + bpB
        sumj = {}
        for prod, i in order:
            o = own(prod, i, 'O', 1, max(split, fin(prod, 1) + 5), dlq[(prod, i)] - 4)
            gi = max(gi, dlq[(prod, i)] - 26)
            gi = S.putds(gi, xr(prod, i))
            n = ('O', prod, i); r = ('R', prod, i)
            ops = [(lambda e=e, n=n, r=r: f"v_add_f32 v{R(n)+e}, v{R(n)+e}, v{R(r)+e}") for e in range(4)]
            if (prod, i) == ('Q2', 4):
                ops += [(lambda e=e, n=n: {0: f"v_mov_b32 v{R(n)+e}, v{R(n)+e}", 1: f"v_mov_b32_dpp v{R(n)+e}, v{R(n)+e} row_shl:1 row_mask:0xf bank_mask:0xf bound_ctrl:1"}) for e in range(4)]
            sumj[(prod, i)] = S.job(ops, gi + lat, dlq[(prod, i)], [r], reads=[r, n], after=[o])
        for i in range(4):
            q1 = ('O', 'Q1', i); s_ = ('O', 'S', i); q2 = ('O', 'Q2', i); q2n = ('O', 'Q2', i+1)
            ops = [(lambda e=e, a=s_, b=q1: f"v_sub_f32 v{R(a)+e}, v{R(a)+e}, v{R(b)+e}") for e in range(4)]
            ops += [(lambda e=e, a=q1, b=q2: f"v_add_f32 v{R(a)+e}, v{R(a)+e}, v{R(b)+e}") for e in range(4)]
            j1 = S.job(ops, 0, spos[2*i]-1, reads=[q1, s_, q2], after=[sumj[('Q1', i)], sumj[('S', i)], sumj[('Q2', i)]])
            S.job([(lambda e=e, a=s_, b=q2n: f"v_sub_f32 v{R(a)+e}, v{R(a)+e}, v{R(b)+e}") for e in range(4)], 0, spos[2*i+1]-1, reads=[s_, q2n], after=[j1, sumj[('Q2', i+1)]])
        b7 = base[7]
        for prod, i in sorted(XQ, key=lambda n: fs_[n]):
            gi = S.put(fs_[(prod, i)] + w7 + (2 if prod == 'Q1' else 0), xw(prod, i, 0)); assert gi < b7 + bp7 - 1, (prod, i, gi - b7)
        G[b7+bp7-1].nds.append(('XW',))
        S.rorder = [('Q2', 0)] + [x for i in range(4) for x in (('Q1', i), ('S', i), ('Q2', i+1))]
        S.tailr = []; gi = b7 + bp7
        for prod, i in S.rorder:
            a, o = xloc(XQ.index((prod, i))); n = ('R2', prod, i)
            it = ('ds', n, (lambda n=n, a=a, o=o: f"ds_read_b128 {RR(n)}, v{vRR+a} offset:{o}"))
            while gi < NG and G[gi].mem is not None: gi += 1
            if gi < NG: gi = S.putds(gi, it)
            else: S.tailr.append(it); S.use(n, NG-1)
            S.use(n, NG)
        S.tailo = []
        for n in XQ:
            if n in oshad: own(n[0], n[1], 'K', 0, fo_[n] + odel, NG-1)
            else: S.tailo.append(n); S.use(('K',) + n, NG-1)
            S.use(('K',) + n, NG)
        S.tailo.sort(key=lambda n: fo_[n])
        S.job([lambda: f"v_xor_b32 v{vIA}, 32768, v{vBO}"], 101, B0 + inp[0] - 2)
        G[B0+inp[0]-1].nvm.append(('CN',))
        for j in range(8):
            n = ('I', j)
            gi = S.put(B0 + inp[j], ('vm', ('IN',), (lambda n=n, j=j: inld(j, RR(n)))))
            S.use(n, gi); S.use(n, NG)
        e0 = base[4] + 2
        sq = [f"s_mul_i32 s{sT}, s{sB}, {1985*1024}", f"s_add_u32 s{sO}, s{sP+10}, s{sT}\ns_addc_u32 s{sO+1}, s{sP+11}, 0", f"s_mov_b32 s{sO+2}, {1985*1024}",
              f"s_lshl_b32 s{sT}, s{sNS}, 7", f"s_lshl_b32 s{sT+1}, s{sKH}, 6", f"s_add_u32 s{sT}, s{sT}, s{sT+1}", f"s_lshl_b32 s{sT+1}, s{sNH}, 5", f"s_add_u32 s{sT}, s{sT}, s{sT+1}",
              f"s_mul_i32 s{sT+1}, s{sTILE}, {TS*1024}", f"s_add_u32 s{sT}, s{sT}, s{sT+1}", f"s_lshl_b32 s{sT+2}, s{sWV}, 16", f"s_add_u32 s{sT+2}, s{sT+2}, s{sT+1}",
              f"s_lshl_b32 s{sT+1}, s{sKS}, 13", f"s_add_u32 s{sT}, s{sT}, s{sT+1}",
              f"s_lshl_b32 s{sXM}, s{sKH}, 8", f"s_lshl_b32 s{sT+1}, s{sNH}, 7", f"s_add_u32 s{sXM}, s{sXM}, s{sT+1}",
              f"s_lshl_b32 s{sT+1}, s{sTILE}, 10", f"s_lshl_b32 s{sCNT}, s{sKS}, 9", f"s_add_u32 s{sCNT}, s{sCNT}, s{sT+1}", (f"s_lshl_b32 s{sXD}, s{sTILE}, 13" if cop == 8 else f"s_mov_b32 s{sXD}, 0"), f"s_mov_b32 s{sIDX}, {spin}"]
        for i, tx in enumerate(sq): S.sreq.append((e0+i, e0+i, [tx]))
        e1 = e0 + len(sq) + 1
        TM = ('TM',); KA = ('KA',); KB = ('KB',)
        if tch:
            gi = S.put(base[4] + tch, ('vm', ('TCH',), lambda: f"buffer_load_dword a192, v{R(TM)+3}, s[{sO}:{sO+3}], s{sT+2} offen")); S.use(TM, gi)
            S.job([lambda: f"v_and_b32 v{R(TM)+3}, 15, v0", lambda: f"v_lshlrev_b32 v{R(TM)+3}, 12, v{R(TM)+3}"], e0, gi-1, writes=[TM])
        j0 = S.job([lambda: f"v_and_b32 v{R(TM)}, 15, v0", lambda: f"v_lshrrev_b32 v{R(TM)+1}, 4, v0",
               lambda: f"v_lshlrev_b32 v{vOA}, 3, v{R(TM)+1}", lambda: f"v_lshl_add_u32 v{R(TM)+2}, v{R(TM)+1}, 5, s{sXM}",
               lambda: f"v_lshl_add_u32 v{vOA}, v{R(TM)}, 14, v{vOA}", lambda: f"v_lshl_add_u32 v{vPOLA}, v{R(TM)}, 9, v{R(TM)+2}",
               lambda: f"v_add_u32 v{vOA}, s{sT}, v{vOA}", lambda: f"v_lshrrev_b32 v{R(TM)+1}, 1, v{R(TM)}",
               lambda: f"v_add_u32 v{vOA+1}, 4096, v{vOA}", lambda: f"v_lshl_add_u32 v{R(TM)+2}, v{R(TM)+1}, {13 if cop == 8 else 16}, v{R(TM)+2}",
               lambda: f"v_and_b32 v{R(TM)+1}, 1, v{R(TM)}", lambda: f"v_add_u32 v{R(TM)+2}, s{sCNT}, v{R(TM)+2}",
               lambda: f"v_add_u32 v{vPOLA}, s{sXD}, v{vPOLA}", lambda: f"v_lshl_add_u32 v{R(TM)+2}, v{R(TM)+1}, 4, v{R(TM)+2}",
               lambda: f"v_cmp_eq_u32 s[{sM1}:{sM1+1}], 1, v{R(TM)+1}",
               lambda: {0: f"s_mov_b64 s[{sMKA}:{sMKA+1}], -1", 1: f"v_cmp_gt_u32 s[{sMKA}:{sMKA+1}], 15, v{R(TM)}"},
               lambda: f"v_and_b32 v{R(KB)+3}, 1, v{R(TM)}", lambda: f"v_cmp_eq_u32 vcc, 15, v{R(TM)}", lambda: f"v_lshlrev_b32 v{R(KB)+3}, 3, v{R(KB)+3}",
               lambda: f"v_sub_u32 v{R(KB)+2}, 128, v{R(KB)+3}", lambda: f"v_addc_co_u32 v{R(KB)+2}, vcc, 0, v{R(KB)+2}, vcc",
               lambda: f"v_cvt_f32_u32 v{R(KB)+2}, v{R(KB)+2}", lambda: f"v_mov_b32 v{R(KB)}, 1.0", lambda: f"v_mov_b32 v{R(KB)+1}, 1.0", lambda: f"v_mov_b32 v{R(KB)+3}, v{R(KB)+2}"],
               max(e1, split+1), b7-8, writes=[TM, KB])
        S.job([lambda: f"v_mov_b32 v{vPUBA}, v{R(TM)+2}"], b7+1, NG-1, reads=[TM], after=[j0])
        if stch: S.put(b7 + stch, ('vm', ('TCH',), f"buffer_load_dword a193, v{vPOLA}, s[{sS}:{sS+3}], 0 offen sc1"))
        S.sreq.append((b7-4, b7-4, [{0: f"s_mov_b64 s[{sMK0}:{sMK0+1}], -1\ns_mov_b32 s{sINV}, 0x3c000000",
                                     1: f"s_cmp_eq_u32 s{sTILE}, 7\ns_cselect_b64 s[{sMK0}:{sMK0+1}], -1, s[{sMKA}:{sMKA+1}]\ns_mov_b32 s{sINV}, 0x3c088889\ns_cmov_b32 s{sINV}, 0x3c0767ab"}]))
        S.job([lambda: f"v_mov_b32 v{R(KA)}, 0xc0135761", lambda: f"v_mov_b32 v{R(KA)+1}, 0xc0135761", lambda: f"v_mov_b32 v{R(KA)+2}, 0xbdd2d3e8", lambda: f"v_mov_b32 v{R(KA)+3}, 0xbdd2d3e8"], b7+fillp, NG-1, writes=[KA])
        for k in range(3):
            n = ('PA', k)
            S.job([lambda n=n, k=k: f"v_accvgpr_read_b32 v{R(n)+1}, a{194+2*k}", lambda n=n, k=k: f"v_accvgpr_read_b32 v{R(n)+3}, a{195+2*k}",
                   lambda n=n: f"v_lshlrev_b32 v{R(n)}, 16, v{R(n)+1}", lambda n=n: f"v_lshlrev_b32 v{R(n)+2}, 16, v{R(n)+3}",
                   lambda n=n: f"v_and_b32 v{R(n)+1}, 0xffff0000, v{R(n)+1}", lambda n=n: f"v_and_b32 v{R(n)+3}, 0xffff0000, v{R(n)+3}"], b7+fillp, NG-1, writes=[n])
            S.use(n, NG)
        S.use(KA, NG); S.use(KB, NG)
        S.schedule()
        return S

    U0 = section(0); U1 = section(1); FN = final(); UF = section(0, True) if peel else None
    N0 = len(U0.G); N1 = len(U1.G)
    def entry(p): return [('E', p, g) for g in range(9)] + [('U', p, g) for g in range(8)] + [('S', p, g) for g in range(nS0)]
    entry0 = entry(0)
    iv = {}
    for n, u in U0.uses.items(): iv.setdefault(n, []).extend(u)
    for n, u in U1.uses.items(): iv.setdefault(n, []).extend([x + N0 for x in u])
    segs = {}
    for n, u in iv.items():
        if n in entry0:
            lo = [x for x in u if x < N0]; hi = [x for x in u if x >= N0]
            segs[n] = [(0, max(lo)), (min(hi), N0+N1)]
        else: segs[n] = [(min(u), max(u))]
    def allocate(segs, order, fixed, aok):
        import random
        rnd = random.Random(1)
        names = list(segs)
        adj = {n: set() for n in names}
        for i, n in enumerate(names):
            for m in names[i+1:]:
                if any(not (b_ < x or a > y) for a, b_ in segs[n] for x, y in segs[m]): adj[n].add(m); adj[m].add(n)
        VS = [('v', vXS+4*i) for i in range(nsets)]; AS = [('a', aXS+4*i) for i in range(NAS)]
        for att in range(3000):
            al = {}; ok = True
            av = {n: set(VS) | (set(AS) if aok(n) else set()) for n in names}
            def assign(n, r):
                al[n] = r
                for m in adj[n]: av[m].discard(r)
            for n, r in fixed.items(): assign(n, r)
            todo = set(n for n in names if n not in al)
            noise = {n: rnd.random()*(3 if att else 0) for n in names}
            while todo:
                n = min(todo, key=lambda n: (len(av[n]) + noise[n], -len(adj[n]), str(n)))
                c = [r for r in av[n] if r[0] == 'a'] or list(av[n])
                if not c: ok = False; break
                nb_ = [m for m in adj[n] if m in todo]
                r = min((sum(1 for m in nb_ if r in av[m]) + rnd.random()*(1.5 if att else 0), r) for r in sorted(c))[1]
                assign(n, r); todo.remove(n)
            if ok: return al
        raise RuntimeError(("alloc fail", n))
    def press(sg, N):
        pr = [0]*(N+1)
        for n, l in sg.items():
            for a, b_ in l:
                for x in range(a, min(b_, N)+1): pr[x] += 1
        return pr
    pr = press(segs, N0+N1); print("pressure", max(pr), [max(pr[i:i+16]) for i in range(0, N0+N1, 16)])
    order = sorted(segs, key=lambda n: (0 if n in entry0 else 1, segs[n][-1][0] if n in entry0 else segs[n][0][0]))
    AL = allocate(segs, order, {}, lambda n: n[0] == 'E' and n[2] == 0)
    fsegs = {n: [(0 if n in entry(1) else min(u), max(u))] for n, u in FN.uses.items()}
    AF = allocate(fsegs, sorted(fsegs, key=lambda n: fsegs[n][0][0]), {n: AL[n] for n in entry(1)}, lambda n: n[0] in ('E2', 'U2'))
    if peel:
        NF = len(UF.G)
        usegs = {n: [(0 if n in entry0 else min(u), NF if n in entry(1) else max(u))] for n, u in UF.uses.items()}
        AU = allocate(usegs, None, {n: AL[n] for n in entry(1)}, lambda n: False)
        print("   peel idle/extra", UF.idle, UF.extra)
    nv = lambda al: max((b - vXS)//4 + 1 for c, b in al.values() if c == 'v')
    print(name, "sets", nv(AL), nv(AF), "idle/extra", [(s.idle, s.extra) for s in (U0, U1, FN)])
    VALRE = r'v_(lshlrev_b64|add_f32|perm|cvt_pk|and_b32|lshlrev_b32 v\d+, 16)'
    def lin(S, nextneeds, al):
        cur['alloc'] = al
        St = Stream()
        for i, g in enumerate(S.G):
            if i == getattr(S, 'split', -1): St.items.append(dict(k='i', s='@split'))
            St.i(g.mfma())
            nd = list(g.nds) + (S.G[i+1].mneed if i+1 < len(S.G) else nextneeds)
            St.need(ds=nd, vm=g.nvm); g.need = St.items[-1]
            g.slot = dict(k='i', s=None); St.items.append(g.slot)
            if g.mem:
                kind, tag, txt = g.mem
                St.items.append(dict(k=kind, tag=tag, s=(txt() if callable(txt) else txt)))
            for v in g.valu:
                t = v()
                if noval and isinstance(t, str) and re.match(VALRE, t): continue
                St.i(t)
        return St
    S0 = lin(U0, U1.G[0].mneed + FN.G[0].mneed, AL); S1 = lin(U1, U0.G[0].mneed, AL); SF = lin(FN, [], AF)
    if peel:
        SU = lin(UF, U1.G[0].mneed, AU)
        UF.sreq.append((UF.base[2], UF.base[5], [f"s_add_u32 s{sXB}, s{sXQ}, s{sXD}"]))
    cur['alloc'] = AU if peel else AL
    U0.sreq.append((U0.base[2], U0.base[5], [f"s_add_u32 s{sXB}, s{sXQ}, s{sXD}"]))
    U1.sreq.append((U1.base[2]+4, U1.base[5], [f"s_add_u32 s{sXQ}, s{sXQ}, 128"]))
    U1.sreq.append((U1.base[2], U1.base[5], [f"s_sub_u32 s{sCNT}, s{sCNT}, 1"]))

    A("s_cmp_ge_u32 s2, 256"); A("s_cbranch_scc1 L_done")
    A(f"s_load_dwordx16 s[{sP}:{sP+15}], s[0:1], 0")
    if stamps: A(f"s_memtime s[{sST}:{sST+1}]"); A(f"s_memrealtime s[{sST+28}:{sST+29}]")
    A("v_lshrrev_b32 v1, 6, v0"); A("v_and_b32 v0, 63, v0")
    if mapm == 0:
        A(f"s_and_b32 s{sNS}, s2, 7"); A(f"s_bfe_u32 s{sKH}, s2, 0x10003"); A(f"s_xor_b32 s{sPRT}, s2, 8")
    elif mapm == 1:
        A(f"s_and_b32 s{sKH}, s2, 1"); A(f"s_bfe_u32 s{sNS}, s2, 0x10003"); A(f"s_and_b32 s{sT}, s2, 6"); A(f"s_or_b32 s{sNS}, s{sNS}, s{sT}"); A(f"s_xor_b32 s{sPRT}, s2, 1")
    if mapm < 2:
        A(f"s_lshr_b32 s{sIDX}, s2, 4")
        A(f"v_readfirstlane_b32 s{sWV}, v1")
        A(f"s_and_b32 s{sTILE}, s{sIDX}, 7"); A(f"s_lshr_b32 s{sB}, s{sIDX}, 3")
    else:
        A(f"s_and_b32 s{sKH}, s2, 1"); A(f"s_bfe_u32 s{sNS}, s2, 0x20003"); A(f"s_and_b32 s{sT}, s2, 2"); A(f"s_lshl_b32 s{sT}, s{sT}, 1"); A(f"s_or_b32 s{sNS}, s{sNS}, s{sT}"); A(f"s_xor_b32 s{sPRT}, s2, 1")
        A(f"v_readfirstlane_b32 s{sWV}, v1")
        A(f"s_lshr_b32 s{sTILE}, s2, 5"); A(f"s_bfe_u32 s{sB}, s2, 0x10002"); A(f"s_lshl_b32 s{sIDX}, s{sTILE}, 1")
    A(f"s_mul_i32 s{sT}, s{sB}, 4000"); A(f"s_mul_i32 s{sT+1}, s{sTILE}, {2*TS}"); A(f"s_add_u32 s{sT}, s{sT}, s{sT+1}")
    A(f"s_lshl_b32 s{sT}, s{sT}, 1"); A(f"s_add_u32 s{sT}, s{sT}, s{sKH}"); A(f"s_lshl_b32 s{sXD}, s{sT}, 9")
    A(f"s_lshl_b32 s{sT+1}, s{sWV}, 16"); A(f"s_add_u32 s{sT}, s{sXD}, s{sT+1}")
    A("v_lshrrev_b32 v40, 4, v0"); A("v_bfe_u32 v41, v0, 3, 1"); A("v_lshl_add_u32 v42, v41, 4, v40"); A("v_lshlrev_b32 v42, 11, v42"); A(f"v_add_u32 v42, s{sT}, v42")
    A("v_and_b32 v43, 7, v0"); A(f"s_lshl_b32 s{sT+1}, s{sWV}, 1"); A(f"v_xor_b32 v44, s{sT+1}, v43"); A(f"v_lshl_add_u32 v{vVX}, v44, 4, v42")
    A(f"s_lshl_b32 s{sT+1}, s{sWV}, 13"); A(f"s_add_u32 s{sT}, s{sXD}, s{sT+1}"); A(f"s_add_u32 s{sT}, s{sT}, {256*2048}")
    A("v_lshlrev_b32 v42, 11, v40"); A("v_lshl_add_u32 v42, v43, 4, v42"); A("v_lshl_add_u32 v42, v41, 30, v42"); A(f"v_add_u32 v{vVX+1}, s{sT}, v42")
    A(f"s_lshl_b32 s{sXM}, s{sWV}, 12"); A(f"s_lshl_b32 s{sXM2}, s{sWV}, 10")
    A(f"s_mov_b32 s{sX+2}, 8192000"); A(f"s_mov_b32 s{sX+3}, 0x20000")
    A(f"s_mov_b32 s{sW+2}, 16252928"); A(f"s_mov_b32 s{sW+3}, 0x20000")
    A(f"s_lshr_b32 s{sKS}, s{sWV}, 1"); A(f"s_and_b32 s{sNH}, s{sWV}, 1")
    A("v_lshrrev_b32 v44, 3, v0"); A("v_and_b32 v45, 2, v44"); A("v_xor_b32 v43, v43, v45")
    A(f"s_lshl_b32 s{sT}, s{sKH}, 18"); A(f"s_lshl_b32 s{sT+1}, s{sWV}, 14"); A(f"s_add_u32 s{sT}, s{sT}, s{sT+1}")
    A(f"s_lshl_b32 s{sT+1}, s{sNS}, 7"); A(f"s_add_u32 s{sT}, s{sT}, s{sT+1}")
    A("v_lshlrev_b32 v44, 10, v44"); A(f"v_add_u32 v44, s{sT}, v44")
    A("v_lshlrev_b32 v45, 4, v43"); A("v_xor_b32 v46, 64, v45")
    A(f"v_add_u32 v{vWO}, v44, v45"); A(f"v_add_u32 v{vWO+1}, v44, v46"); A(f"v_add_u32 v{vWO+1}, 7168, v{vWO+1}")
    A(f"s_lshl_b32 s{sT+1}, s{sKS}, 15"); A(f"s_lshl_b32 s{sT+2}, s{sNH}, 11"); A(f"s_add_u32 s{sM0}, s{sT+1}, s{sT+2}"); A(f"s_add_u32 s{sM0}, s{sM0}, {WBASE}")
    A(f"s_min_u32 s{sPFA+1}, s{sIDX}, 14"); A(f"s_lshl_b32 s{sPFA+1}, s{sPFA+1}, 20"); A(f"s_lshl_b32 s{sPFA}, s{sIDX}, 20")
    A("v_lshrrev_b32 v46, 2, v0"); A("v_lshlrev_b32 v46, 10, v46"); A(f"v_add_u32 v{vPF}, s{sT}, v46")
    if mapm == 2: A("v_and_b32 v46, 1, v0"); A(f"v_lshl_add_u32 v{vPF}, v46, 20, v{vPF}")
    A(f"s_add_u32 s{sPFA+1}, s{sPFA+1}, 524288")
    A(f"s_mov_b32 s{sWC}, 0"); A(f"s_mov_b32 s{sXO}, 0"); A(f"s_mov_b32 m0, s{sXM}")
    A("s_waitcnt lgkmcnt(0)")
    A(f"s_mov_b32 s{sX}, s{sP}"); A(f"s_mov_b32 s{sX+1}, s{sP+1}")
    A(f"s_mov_b32 s{sW}, s{sP+2}"); A(f"s_mov_b32 s{sW+1}, s{sP+3}")
    stamp(20)
    P = Stream()
    def padd(it):
        kind, tag, txt = it
        P.items.append(dict(k=kind, tag=tag, s=txt() if callable(txt) else txt))
    def pw(PP):
        for a in range(2):
            P.i(f"s_add_u32 m0, s{sM0}, {4096*(2*PP+a)}"); P.i(f"s_mov_b32 s{sWO}, {2*(2*PP+a)*524288}")
            for d in range(2): padd(wdma(PP, vWO, d))
    def px0(cs, first=False):
        for c in cs:
            if not (first and c == 0): P.i(xm0(0, c)); P.i(f"s_mov_b32 s{sXO}, {xgo(c)}")
            padd(xdma(0, c))
            if c == 0: P.items[-1]['tag'] = ('X1st',)
    def colbase(I, d):
        I(f"s_lshl_b32 s{sT}, s{sNS}, 7"); I(f"s_lshl_b32 s{sT+1}, s{sKH}, 6"); I(f"s_add_u32 s{sT}, s{sT}, s{sT+1}")
        I(f"s_lshl_b32 s{sT+1}, s{sNH}, 5"); I(f"s_add_u32 s{sT}, s{sT}, s{sT+1}")
    def setup():
        if xpf == 3:
            P.i(f"s_and_b32 s{sT+1}, s{sNS}, 3"); P.i(f"s_lshl_b32 s{sT+1}, s{sT+1}, 2"); P.i(f"s_add_u32 s{sT+1}, s{sT+1}, s{sWV}")
            P.i(f"s_mul_i32 s{sT+1}, s{sT+1}, {17*2048}"); P.i(f"s_add_u32 s{sT+1}, s{sT+1}, s{sXD}")
            P.i("v_lshlrev_b32 v46, 11, v0"); P.i(f"v_add_u32 v46, s{sT+1}, v46"); P.i("v_cmp_gt_u32 vcc, 17, v0")
        elif xpf == 2:
            P.i(f"s_and_b32 s{sT+1}, s{sNS}, 1"); P.i(f"s_lshl_b32 s{sT+1}, s{sT+1}, 2"); P.i(f"s_add_u32 s{sT+1}, s{sT+1}, s{sWV}")
            P.i(f"s_mul_i32 s{sT+1}, s{sT+1}, {34*2048}"); P.i(f"s_add_u32 s{sT+1}, s{sT+1}, s{sXD}")
            P.i("v_lshlrev_b32 v46, 11, v0"); P.i(f"v_add_u32 v46, s{sT+1}, v46"); P.i("v_cmp_gt_u32 vcc, 34, v0")
        else:
            P.i(f"s_mul_i32 s{sT+1}, s{sWV}, 9"); P.i(f"v_add_u32 v46, s{sT+1}, v0"); P.i("v_cmp_gt_u32 vcc, 9, v0")
            P.i(f"s_mul_i32 s{sT+1}, s{sNS}, {34*2048}"); P.i(f"s_add_u32 s{sT+1}, s{sT+1}, s{sXD}")
            P.i("v_cndmask_b32 v47, 64, v46, vcc"); P.i("v_lshlrev_b32 v46, 11, v46"); P.i(f"v_add_u32 v46, s{sT+1}, v46"); P.i("v_cmp_gt_u32 vcc, 34, v47")
        P.i(f"v_mov_b32 v{vPX}, 0x40000000"); P.i(f"s_mov_b32 s{sPX}, 1024"); P.i(f"v_cndmask_b32 v{vPX}, v{vPX}, v46, vcc")
        P.i(f"v_mov_b32 v{vWB}, v{vWO}"); P.i(f"v_mov_b32 v{vWB+1}, v{vWO+1}")
        P.i("v_and_b32 v46, 3, v43"); P.i("v_lshl_add_u32 v46, v46, 4, v44"); P.i(f"s_lshl_b32 s{sT+1}, s{sKH}, 6"); P.i(f"v_add_u32 v46, s{sT+1}, v46")
        P.i("v_lshrrev_b32 v47, 2, v43"); P.i(f"v_xor_b32 v47, s{sKH}, v47"); P.i(f"v_lshl_add_u32 v{vWK}, v47, 20, v46")
        P.i("v_xor_b32 v47, 1, v47"); P.i(f"v_lshl_add_u32 v{vWK+1}, v47, 20, v46"); P.i(f"v_add_u32 v{vWK+1}, 7168, v{vWK+1}")
        P.i(f"s_lshl_b32 s{sGRP}, s{sB}, 3"); P.i(f"s_add_u32 s{sGRP}, s{sGRP}, s{sNS}")
        P.i(f"s_lshl_b32 s{sT}, s{sGRP}, {16 if cop == 8 else 13}"); P.i(f"s_add_u32 s{sS}, s{sP+14}, s{sT}"); P.i(f"s_addc_u32 s{sS+1}, s{sP+15}, 0")
        P.i(f"s_mov_b32 s{sS+2}, {65536 if cop == 8 else 8192}"); P.i(f"s_mov_b32 s{sS+3}, 0x20000")
        P.i(f"s_lshl_b32 s{sT}, s{sTILE}, 10"); P.i(f"s_lshl_b32 s{sT+1}, s{sKS}, 9"); P.i(f"s_add_u32 s{sT}, s{sT}, s{sT+1}")
        P.i(f"s_lshl_b32 s{sT+1}, s{sKH}, 8"); P.i(f"s_add_u32 s{sT}, s{sT}, s{sT+1}"); P.i(f"s_lshl_b32 s{sT+1}, s{sNH}, 7"); P.i(f"s_add_u32 s{sT}, s{sT}, s{sT+1}")
        P.i("v_lshlrev_b32 v46, 4, v0"); P.i("v_and_b32 v52, 0x70, v46"); P.i("v_lshrrev_b32 v47, 3, v0"); P.i(f"v_lshl_add_u32 v52, v47, {13 if cop == 8 else 16}, v52"); P.i(f"v_add_u32 v52, s{sT}, v52")
        P.i(f"s_lshr_b32 s{sT}, s2, 1"); P.i(f"s_lshl_b32 s{sT}, s{sT}, 16"); P.i(f"s_add_u32 s{sT}, s{sT}, {BOX}"); P.i(f"s_add_u32 s{sBX}, s{sP+14}, s{sT}"); P.i(f"s_addc_u32 s{sBX+1}, s{sP+15}, 0")
        P.i(f"s_mov_b32 s{sBX+2}, {0 if noclr else 65536}"); P.i(f"s_mov_b32 s{sBX+3}, 0x20000")
        P.i(f"s_lshl_b32 s{sT}, s{sKH}, 2"); P.i(f"s_add_u32 s{sT}, s{sT}, s{sWV}"); P.i(f"s_lshl_b32 s{sT}, s{sT}, 13"); P.i(f"v_add_u32 v{vCNT}, s{sT}, v46"); P.i(f"s_mov_b32 s{sK4}, 4096")
        for i in range(4): P.i(f"v_accvgpr_write_b32 a{200+i}, -1")
        P.i(f"s_mov_b32 s{sD}, s{sP+12}"); P.i(f"s_mov_b32 s{sD+1}, s{sP+13}"); P.i(f"s_mov_b32 s{sD+2}, 256"); P.i(f"s_mov_b32 s{sD+3}, 0x20000")
        colbase(P.i, 0)
        P.i("v_lshlrev_b32 v53, 3, v40"); P.i(f"v_add_u32 v53, s{sT}, v53")
        P.i(f"s_lshl_b32 s{sT}, s{sKS}, 2"); P.i(f"v_add_u32 v41, s{sT}, v40"); P.i("v_and_b32 v42, 15, v0")
        for q0 in range(2):
            P.i(f"v_add_u32 v43, {q0}, v42"); P.i("v_lshrrev_b32 v44, 1, v43"); P.i("v_and_b32 v45, 3, v44"); P.i("v_lshlrev_b32 v45, 1, v45"); P.i("v_xor_b32 v45, v45, v41")
            P.i("v_and_b32 v43, 1, v43"); P.i("v_lshlrev_b32 v43, 7, v43"); P.i("v_lshl_add_u32 v43, v45, 4, v43"); P.i(f"v_lshl_add_u32 v{vAA+q0}, v44, 12, v43")
        P.i("v_bfe_u32 v42, v0, 2, 2"); P.i("v_lshl_add_u32 v43, v40, 3, v42"); P.i("v_lshlrev_b32 v43, 7, v43")
        P.i("v_and_b32 v44, 3, v0"); P.i("v_lshl_add_u32 v43, v44, 3, v43")
        P.i(f"s_lshl_b32 s{sT}, s{sKS}, 15"); P.i(f"s_add_u32 s{sT}, s{sT}, {WBASE}"); P.i(f"v_add_u32 v43, s{sT}, v43")
        P.i("v_lshrrev_b32 v42, 1, v42"); P.i("v_and_b32 v44, 1, v40"); P.i("v_lshl_or_b32 v42, v44, 1, v42")
        P.i(f"s_lshl_b32 s{sT}, s{sKH}, 1"); P.i(f"s_add_u32 s{sT}, s{sT}, s{sNH}"); P.i(f"v_xor_b32 v42, s{sT}, v42")
        P.i(f"v_lshl_add_u32 v{vTA}, v42, 5, v43"); P.i(f"v_xor_b32 v{vTA+1}, 64, v{vTA}")
        P.i(f"s_mov_b32 s{sSEL}, 0x07060302"); P.i(f"s_mov_b32 s{sMSK}, 0xffff0000")
        P.i(f"s_mov_b32 s{sCNT}, 3"); P.i(f"s_mov_b32 s{sXQ}, 0"); P.i(f"s_mov_b32 s{sSTEP}, 1048576"); P.i(f"s_mov_b32 s{sXD}, 128")
        if not peel:
            for k in range(192): P.i(f"v_accvgpr_write_b32 a{k}, 0")
    def step(x):
        if x == 'x': px0((0, 4, 1, 5, 2, 6, 3, 7), pord[0] == 'x')
        elif x == 'a':
            stamp(30, P)
            for i_, w_ in enumerate(arr): P.i(f"s_waitcnt vmcnt({w_})"); stamp(31+i_, P)
        elif x == 'X': px0((0, 4, 1, 5), pord[0] == 'X')
        elif x == 'Y': px0((2, 6, 3, 7))
        elif x == '.': pass
        elif x == 't': px0((8,))
        elif x in '0123': pw(int(x))
        elif x == 's': setup(); stamp(27, P)
        elif x == 'f':
            if pref: P.vm(('PF',), f"buffer_load_dword a192, v{vPF}, s[{sW}:{sW+3}], s{sPFA} offen")
            P.i(f"s_add_u32 s{sPFA}, s{sPFA}, 65536")
        elif x == 'g':
            if xpf: P.vm(('PX',), f"buffer_load_dword a193, v{vPX}, s[{sX}:{sX+3}], s{sPX} offen")
        elif x == 'c':
            P.vm(('CLR',), f"buffer_store_dwordx4 a[200:203], v52, s[{sS}:{sS+3}], 0 offen sc1")
            if not clrk:
                for j in range(8): P.vm(('CLR',), clr(j))
        elif x == 'p':
            for k in range(3): P.vm(('PAR',), f"global_load_dwordx2 a[{194+2*k}:{195+2*k}], v53, s[{sP+4+2*k}:{sP+5+2*k}]")
        elif x == 'y':
            for i, xk in enumerate(xdk):
                if xk > jx and not nox:
                    for c in xdc[i]:
                        P.i(xm0(1, c)); P.i(f"s_mov_b32 s{sXO}, {1024 + xgo(c)}"); padd(xdma(1, c))
        else: raise ValueError(x)
    pre, post = pord.split("|")[0], pord.split("|")[-1]
    twob = pord.count("|") == 2
    for x in pre: step(x)
    if stampset == 3:
        stamp(25, P); P.need(vm=[('XD', 0)]); stamp(26, P)
    P.need(vm=[('XD', 0)] + ([] if twob else [('W', 0)]))
    if not twob: stamp(21, P)
    P.i("s_barrier")
    for ty, g in NXT: padd(xread((ty, 0, g)))
    def trs():
        for a in range(2):
            for nb in range(2):
                for h in range(2): padd(tr(a, a, 0, nb, h))
    if not twob: trs()
    mid = list(pord.split("|")[1])
    for g_ in range(nS0):
        if mid: step(mid.pop(0))
        P.need(ds=[('U', 0, g_), ('E', 0, g_+1)])
        for hf in range(2):
            for op in sjob(0, g_, hf): P.i(op())
    for x in mid: step(x)
    if twob:
        P.need(vm=[('W', 0)]); stamp(21, P); P.i("s_barrier"); trs()
        for x in post: step(x)
    P.need(ds=[('E', 0, 8)] + ([] if peel else [('H', 1, 0, 1)]) + U0.G[0].mneed)
    stamp(1, P)
    if stamps: P.i(f"s_memrealtime s[{sST+24}:{sST+25}]")
    paths = [P.items + (SU if peel else S0).items + S1.items + S0.items + S1.items + S0.items + SF.items]
    resolve(paths); prune_waits(paths)
    def place(S):
        occ = [1 if (g.need['nds'] is not None or g.need['nvm'] is not None) else 0 for g in S.G]
        for i, g in enumerate(S.G): occ[i] += len(g.scal)
        dbl = sum(1 for o in occ if o > 1)
        for req in sorted(S.sreq, key=lambda r: r[1]-r[0]):
            lo, hi, txts = req[0], req[1], req[2]
            if len(req) > 3 and req[3] >= 0: lo += 1
            for tx in txts:
                rng = list(range(hi, lo-1, -1))
                assert rng, (lo, hi, tx)
                best = min(rng, key=lambda x: occ[x])
                if occ[best]: dbl += 1
                S.G[best].scal.append(tx); occ[best] += 1
        for g in S.G:
            if any(isinstance(x, dict) for x in g.scal): g.slot['s'] = {ks: "\n".join(x[ks] if isinstance(x, dict) else x for x in g.scal) for ks in (0, 1)}
            else: g.slot['s'] = "\n".join(g.scal) if g.scal else None
        return dbl
    dbl = [place(s) for s in (U0, U1, FN) + ((UF,) if peel else ())]
    nw = [sum(1 for g in s.G if g.need['nds'] is not None or g.need['nvm'] is not None) for s in (U0, U1, FN)]
    print("   double scalars", dbl, "waits", nw)
    def emit2(items, ks=None):
        its = []
        for it in items:
            if it['k'] != 'need':
                if it['s'] is None: continue
                if isinstance(it['s'], dict): it = dict(it); it['s'] = it['s'][ks]
            its.append(it)
        emit(its, L)
    emit2(P.items)
    if peel: emit2(SU.items); A("s_branch L_u1")
    A(".p2align 6"); A("L_loop:")
    emit2(S0.items)
    A(f"s_cmp_eq_u32 s{sCNT}, 0"); A("s_cbranch_scc1 L_final")
    A("L_u1:")
    emit2(S1.items)
    A(f"s_add_u32 s{sWC}, s{sWC}, 65536")
    if clrk: A(f"s_mov_b32 s{sBX+2}, 0")
    if stamps and stampset != 4:
        A(f"s_mov_b64 s[{sST+4}:{sST+5}], s[{sST+6}:{sST+7}]"); A(f"s_mov_b64 s[{sST+6}:{sST+7}], s[{sST+8}:{sST+9}]"); stamp(4)
    A(f"s_cmp_lg_u32 s{sCNT}, 0"); A("s_cbranch_scc1 L_loop")
    A(f"v_xor_b32 v{vWB}, 64, v{vWK}"); A(f"v_xor_b32 v{vWB+1}, 64, v{vWK+1}"); A(f"s_mov_b32 s{sSTEP}, 2097152"); A(f"s_mov_b32 s{sXD}, 0x40000000"); A(f"s_mov_b32 s{sBX+2}, 65536")
    A(f"s_lshl_b32 s{sT}, s{sWV}, 14"); A(f"s_lshl_b32 s{sT+1}, s{sGRP}, 4"); A(f"s_add_u32 s{sT}, s{sT}, s{sT+1}")
    A(f"v_lshlrev_b32 v{vCNT}, 8, v0"); A(f"v_add_u32 v{vCNT}, s{sT}, v{vCNT}"); A(f"v_mov_b32 v{vT}, 1")
    A(f"buffer_atomic_add v{vT}, v{vCNT}, s[{sD}:{sD+3}], 0 offen sc1")
    A("s_branch L_loop")
    A(".p2align 6"); A("L_final:")
    sp = [i for i, it in enumerate(SF.items) if it.get('s') == '@split'][0]
    emit2(SF.items[:sp])
    cur['alloc'] = AF
    own = {n: AF[('K',) + n][1] for n in XQ}; rcv = {n: AF[('R2',) + n][1] for n in XQ}; inb = [AF[('I', j)][1] for j in range(8)]
    vBI, vGA, vBE = [AF[('PA', k)][1] for k in range(3)]; vK = AF[('KA',)][1]; vONE = AF[('KB',)][1]; vN = vONE + 2
    live = set(own.values()) | set(rcv.values()) | set(inb) | {vBI, vGA, vBE, vK, vONE}
    tv = [b for b in range(16, 256, 4) if b not in live]
    def grab(n):
        for b in tv:
            if all(b + 4*i in tv for i in range(n)):
                for i in range(n): tv.remove(b + 4*i)
                return b
        raise RuntimeError("grab")
    vU = 16; tv.remove(16); vS = 20; tv.remove(20); vQ = 24; tv.remove(24)
    vG = 28; tv.remove(28); tv.remove(32)
    rorder = FN.rorder
    def imax():
        for j in range(8):
            if j == 0: A(f"v_max3_u32 v{vU}, v{inb[0]}, v{inb[0]+1}, v{inb[0]+2}"); A(f"v_max_u32 v{vU+1}, v{inb[0]+3}, v{inb[0]+3}")
            else: A(f"v_max3_u32 v{vU}, v{vU}, v{inb[j]}, v{inb[j]+1}"); A(f"v_max3_u32 v{vU+1}, v{vU+1}, v{inb[j]+2}, v{inb[j]+3}")
        A(f"v_max_u32 v{vU}, v{vU}, v{vU+1}")
        A(f"v_cmp_eq_u32 vcc, -1, v{vU}")
    A(f"s_cmp_eq_u32 s{sKS}, 1"); A("s_cbranch_scc1 L_ks1")
    for ks in (0, 1):
        if ks == 1: A(".p2align 6"); A("L_ks1:")
        emit2(SF.items[sp+1:], ks)
        stamp(5)
        if stamps: A(f"s_memrealtime s[{sST+26}:{sST+27}]")
        for it in FN.tailr: A(it[2]())
        A(f"v_readfirstlane_b32 s{sT+1}, v{vCNT}")
        def rd(n):
            for e in range(4): A(f"v_accvgpr_read_b32 v{own[n]+e}, a{accr(n[0], xf(ks, n[1]), 0)+e}")
        for n in FN.tailo[:-4]: rd(n)
        A(f"s_waitcnt vmcnt({1 if stch else 0})")
        imax()
        for n in FN.tailo[-4:]: rd(n)
        A(f"s_cmp_lt_u32 s{sT+1}, 16"); A("s_cbranch_scc1 L_cpoll")
        A("s_cbranch_vccnz L_islow")
        if ks == 0: A("s_branch L_iok")
    A("L_iok:")
    stamp(6)
    def poll():
        A(f"buffer_load_dwordx4 v[{vG}:{vG+3}], v{vPOLA}, s[{sS}:{sS+3}], 0 offen {lpol}")
        A(f"buffer_load_dwordx4 v[{vG+4}:{vG+7}], v{vPOLA}, s[{sS}:{sS+3}], 0 offen offset:16 {lpol}")
    def pk(op, d, a, b, c=None, mod=""):
        s = f"v_pk_{op}_f32 v[{d}:{d+1}], v[{a}:{a+1}], v[{b}:{b+1}]"
        if c is not None: s += f", v[{c}:{c+1}]"
        A(s + mod)
    NEG = " neg_lo:[0,1] neg_hi:[0,1]"
    def q(op, d, a, b, mod=""): pk(op, d, a, b, mod=mod); pk(op, d+2, a+2, b+2, mod=mod)
    V = [own[('Q1' if j % 2 == 0 else 'S', j >> 1)] for j in range(8)]
    A(f"s_cmp_eq_u32 s{sKS}, 0")
    if epoll == 1: poll()
    for j in range(8): q('add', V[j], V[j], inb[j]) if j & 1 else None
    for i, n in enumerate(rorder):
        A(f"s_waitcnt lgkmcnt({12-i})"); q('add', own[n], own[n], rcv[n])
        if n == ('Q2', 4):
            A(f"s_cbranch_scc1 L_nodpp"); A("s_nop 0")
            for e in range(4): A(f"v_mov_b32_dpp v{own[n]+e}, v{own[n]+e} row_shl:1 row_mask:0xf bank_mask:0xf bound_ctrl:1")
            A("L_nodpp:")
        if n[0] == 'Q2' and n[1] > 0:
            k = n[1]-1
            q('add', inb[2*k], inb[2*k], own[('Q2', k)])
            q('add', own[('S', k)], own[('S', k)], own[('Q1', k)], NEG); q('add', own[('Q1', k)], own[('Q1', k)], inb[2*k]); q('add', own[('S', k)], own[('S', k)], own[n], NEG)
    if npoll > 2 or epoll == 2: poll()
    tv += [b for b in live if b not in V and b not in (vBI, vGA, vBE, vK, vONE)]; tv.sort()
    vZ2 = [grab(5), grab(5)]
    vM, vPUB, vAc, vCc = [grab(1) for _ in range(4)]
    def dppred(b):
        for sh in (8, 4, 2, 1):
            for i in range(4): A(f"v_add_f32_dpp v{b+i}, v{b+i}, v{b+i} row_ror:{sh} row_mask:0xf bank_mask:0xf")
    def setexec(j):
        if j == 0: A(f"s_mov_b64 exec, s[{sMK0}:{sMK0+1}]")
        if j == 1: A(f"s_mov_b64 exec, s[{sMKA}:{sMKA+1}]")
    for i in range(4): A(f"v_mov_b32 v{vS+i}, 0"); A(f"v_mov_b32 v{vQ+i}, 0")
    for j in range(8): setexec(j); q('add', vS, vS, V[j])
    A("s_mov_b64 exec, -1"); A("s_nop 0")
    dppred(vS)
    if npoll > 1: poll()
    for i in range(4): A(f"v_mul_f32 v{vM+i}, s{sINV}, v{vS+i}")
    for j in range(8):
        setexec(j); o = V[j]
        q('add', o, o, vM, NEG); pk('fma', vQ, o, o, vQ); pk('fma', vQ+2, o+2, o+2, vQ+2)
    A("s_mov_b64 exec, -1")
    q('add', vM, vM, vBI)
    dppred(vQ)
    for i in range(4): A(f"v_cndmask_b32 v{vPUB+i}, v{vM+i}, v{vQ+i}, s[{sM1}:{sM1+1}]")
    for i in range(4): A(f"v_min_u32 v{vPUB+i}, -2, v{vPUB+i}")
    if apub:
        A(f"buffer_atomic_{apub}_x2 v[{vPUB}:{vPUB+1}], v{vPUBA}, s[{sS}:{sS+3}], 0 offen {spol}")
        A(f"buffer_atomic_{apub}_x2 v[{vPUB+2}:{vPUB+3}], v{vPUBA}, s[{sS}:{sS+3}], 0 offen offset:8 {spol}")
    else: A(f"buffer_store_dwordx4 v[{vPUB}:{vPUB+3}], v{vPUBA}, s[{sS}:{sS+3}], 0 offen {spol}")
    stamp(7)
    def pcheck():
        A(f"v_max3_u32 v{vU}, v{vG}, v{vG+1}, v{vG+2}"); A(f"v_max3_u32 v{vU+1}, v{vG+3}, v{vG+4}, v{vG+5}")
        A(f"v_max3_u32 v{vU}, v{vU}, v{vG+6}, v{vG+7}"); A(f"v_max_u32 v{vU}, v{vU}, v{vU+1}")
        A(f"v_cmp_eq_u32 vcc, -1, v{vU}")
    A(f"v_mov_b32 v{vQ}, 0x3727c5ac"); A(f"v_mov_b32 v{vQ+1}, 0x3727c5ac")
    if epoll: A(f"s_waitcnt vmcnt({2 if apub else 1})"); pcheck(); A("s_mov_b64 exec, vcc")
    if ackw: A("s_waitcnt vmcnt(0)"); stamp(40)
    A(f"s_mov_b32 s{sIDX}, {spin}"); A(f"s_mov_b32 s{sT}, 0x3a040ffe"); A(f"s_mov_b32 s{sT+1}, s{sT}")
    A("L_poll:")
    poll()
    A(f"s_sub_u32 s{sIDX}, s{sIDX}, 1"); A("s_cbranch_scc1 L_pollout")
    A(f"s_waitcnt vmcnt({2*(npoll-1)})")
    A(f"v_max3_u32 v{vU}, v{vG}, v{vG+1}, v{vG+2}"); A(f"v_max3_u32 v{vU+1}, v{vG+3}, v{vG+4}, v{vG+5}")
    A(f"v_max3_u32 v{vU}, v{vU}, v{vG+6}, v{vG+7}"); A(f"v_max_u32 v{vU}, v{vU}, v{vU+1}")
    A(f"v_cmp_eq_u32 vcc, -1, v{vU}")
    if wth is None:
        A("s_mov_b64 exec, vcc"); A("s_cbranch_execnz L_poll")
    else:
        A("s_mov_b64 exec, vcc"); A("s_cbranch_execnz L_watch")
    A("L_pollout:")
    A("s_mov_b64 exec, -1")
    stamp(8)
    SI = f"s[{sT}:{sT+1}]"
    q('mul', vS, vG, vN) if False else (pk('mul', vS, vG, vN), pk('mul', vS+2, vG+2, vN))
    A("s_nop 0")
    dppred(vS)
    for h in (0, 2): A(f"v_pk_mul_f32 v[{vS+h}:{vS+h+1}], v[{vS+h}:{vS+h+1}], {SI}")
    q('add', vU, vG, vS, NEG)
    pk('mul', vPUB, vU, vN); pk('mul', vPUB+2, vU+2, vN)
    pk('fma', vU, vPUB, vU, vG+4); pk('fma', vU+2, vPUB+2, vU+2, vG+6)
    q('add', vM, vM, vS, NEG)
    dppred(vU)
    for h in (0, 2): A(f"v_pk_fma_f32 v[{vU+h}:{vU+h+1}], v[{vU+h}:{vU+h+1}], {SI}, v[{vQ}:{vQ+1}]")
    for i in range(4): A(f"v_rsq_f32 v{vU+i}, v{vU+i}")
    A("s_nop 0")
    q('mul', vAc, vU, vGA)
    pk('fma', vCc, vM, vAc, vBE); pk('fma', vCc+2, vM+2, vAc+2, vBE+2)
    for f0 in range(0, 8, 2):
        z = vZ2[(f0 >> 1) & 1]; t = z + 8; pkr = z + 16
        for h in range(4): pk('fma', z+2*h, V[f0 + (h >> 1)] + 2*(h & 1), vAc+2*(h & 1), vCc+2*(h & 1))
        for h in range(4): pk('mul', t+2*h, z+2*h, z+2*h)
        for h in range(4): pk('fma', t+2*h, t+2*h, vK+2, vK)
        for h in range(4): pk('mul', t+2*h, t+2*h, z+2*h)
        for k in range(8): A(f"v_exp_f32 v{t+k}, v{t+k}")
        for h in range(4): pk('add', t+2*h, t+2*h, vONE)
        for k in range(8): A(f"v_rcp_f32 v{t+k}, v{t+k}")
        for h in range(4): pk('mul', z+2*h, t+2*h, z+2*h)
        for h in range(4): A(f"v_cvt_pk_bf16_f32 v{pkr+h}, v{z+2*h}, v{z+2*h+1}")
        for k in range(2):
            j = f0 + k
            if j == 0: A(f"s_mov_b64 exec, s[{sMK0}:{sMK0+1}]")
            if j == 1: A(f"s_mov_b64 exec, s[{sMKA}:{sMKA+1}]")
            A(f"buffer_store_dwordx2 v[{pkr+2*k}:{pkr+2*k+1}], v{vOA + (j>>2)}, s[{sO}:{sO+3}], 0 offen offset:{(j&3)*1024} {opol}".rstrip())
    if stamps:
        A("s_mov_b64 exec, -1")
        stamp(9); A("s_waitcnt vmcnt(0)"); stamp(10); A(f"s_memrealtime s[{sST+30}:{sST+31}]")
        A("s_waitcnt lgkmcnt(0)")
        A(f"s_add_u32 s{sX}, s{sP+14}, 0x8000000"); A(f"s_addc_u32 s{sX+1}, s{sP+15}, 0"); A(f"s_mov_b32 s{sX+2}, 0x100000"); A(f"s_mov_b32 s{sX+3}, 0x20000")
        A(f"s_getreg_b32 s{sST+22}, hwreg(HW_REG_XCC_ID)"); A(f"s_sub_u32 s{sST+23}, {spin}, s{sIDX}" if cntp else f"s_getreg_b32 s{sST+23}, hwreg(HW_REG_HW_ID)")
        A(f"s_xor_b32 s{sT}, s{sPRT}, {8 if mapm == 0 else 1}"); A(f"s_lshl_b32 s{sT}, s{sT}, 2"); A(f"s_add_u32 s{sT}, s{sT}, s{sWV}"); A(f"s_lshl_b32 s{sT}, s{sT}, 7")
        for i in range(32): A(f"v_mov_b32 v{24+i}, s{sST+i}")
        A("v_mov_b32 v2, 0"); A("s_mov_b64 exec, 1")
        for i in range(8): A(f"buffer_store_dwordx4 v[{24+4*i}:{27+4*i}], v2, s[{sX}:{sX+3}], s{sT} offen offset:{16*i}")
        A("s_waitcnt vmcnt(0)")
    A("L_done:"); A("s_endpgm")
    if wth is not None:
        A("L_watch:")
        A(f"s_bcnt1_i32_b64 s{sT+2}, vcc"); A(f"s_cmp_le_u32 s{sT+2}, {4*wth}"); A("s_cbranch_scc1 L_poll")
        A(f"s_mov_b64 s[{sM2}:{sM2+1}], vcc"); A(f"s_ff1_i32_b64 s{sT+2}, vcc"); A(f"s_lshl_b64 exec, 1, s{sT+2}")
        A("L_wloop:")
        A(f"buffer_load_dword v{vU}, v{vPOLA}, s[{sS}:{sS+3}], 0 offen sc1")
        A(f"s_sub_u32 s{sIDX}, s{sIDX}, 1"); A("s_cbranch_scc1 L_pollout")
        A("s_waitcnt vmcnt(0)")
        A(f"v_cmp_eq_u32 vcc, -1, v{vU}"); A("s_nop 1")
        A("s_cbranch_vccnz L_wloop")
        A(f"s_mov_b64 exec, s[{sM2}:{sM2+1}]"); A("s_branch L_poll")
    A("L_cpoll:")
    A(f"buffer_load_dword v{vCNT}, v{vCA}, s[{sD}:{sD+3}], 0 offen sc1")
    A(f"s_sub_u32 s{sIDX}, s{sIDX}, 1"); A("s_cbranch_scc1 L_iok")
    A("s_waitcnt vmcnt(0)")
    A(f"v_readfirstlane_b32 s{sT+1}, v{vCNT}"); A(f"s_cmp_lt_u32 s{sT+1}, 16"); A("s_cbranch_scc1 L_cpoll")
    A("s_branch L_irel")
    A("L_islow:")
    A("s_mov_b64 exec, 1")
    A("L_ilight:")
    A(f"buffer_load_dword v{vU}, v{vIA}, s[{sBX}:{sBX+3}], {'s%d' % sK4 if wj >= 4 else '0'} offen offset:{(wj&3)*1024} sc1")
    A(f"s_sub_u32 s{sIDX}, s{sIDX}, 1"); A("s_cbranch_scc1 L_ilx")
    A("s_waitcnt vmcnt(0)")
    A(f"v_cmp_eq_u32 vcc, -1, v{vU}"); A("s_nop 1")
    A("s_cbranch_vccnz L_ilight")
    A("L_ilx:")
    A("s_mov_b64 exec, -1"); A(f"s_max_i32 s{sIDX}, s{sIDX}, 0")
    A("L_irel:")
    for j in range(8): A(inld(j, f"v[{inb[j]}:{inb[j]+3}]"))
    A("s_waitcnt vmcnt(0)")
    imax(); A(f"s_sub_u32 s{sIDX}, s{sIDX}, 1"); A("s_cbranch_scc1 L_iok")
    A("s_cbranch_vccnz L_irel")
    A("s_branch L_iok")
    A('.section .rodata,"a"'); A(".p2align 6"); A(f".amdhsa_kernel {KN}")
    A("  .amdhsa_next_free_vgpr 512"); A("  .amdhsa_next_free_sgpr 102"); A("  .amdhsa_accum_offset 256")
    A("  .amdhsa_group_segment_fixed_size 0"); A("  .amdhsa_kernarg_size 64"); A("  .amdhsa_user_sgpr_count 2")
    A("  .amdhsa_user_sgpr_kernarg_segment_ptr 1"); A("  .amdhsa_system_sgpr_workgroup_id_x 1"); A(".end_amdhsa_kernel")
    open(name + ".s", "w").write("\n".join(L) + "\n")
    build(name + ".s")
    return name

if __name__ == "__main__":
    for a in sys.argv[1:]:
        nm, _, kw = a.partition(":")
        gen(nm, **(eval("dict(" + kw + ")") if kw else {}))
```
